```python
import torch

def _softmax(x, axis=-1):
    return torch.softmax(x, dim=axis)
def _gelu(x):
    return torch.nn.functional.gelu(x, approximate="tanh")
def _silu(x):
    return torch.nn.functional.silu(x)
def _sigmoid(x):
    return torch.sigmoid(x)
def _layernorm(x, axis=-1, eps=1e-5):
    m = x.mean(dim=axis, keepdim=True)
    v = x.var(dim=axis, keepdim=True, unbiased=False)
    return (x - m) / torch.sqrt(v + eps)
def _scatter_add(tgt, idx, src, axis=0):
    return tgt.clone().index_add_(axis, idx, src)
def _segment_sum(src, seg, n):
    out = torch.zeros((n,) + src.shape[1:], dtype=src.dtype)
    return out.index_add_(0, seg, src)
def _pad(x, pw):
    flat = tuple(v for pair in reversed(pw) for v in pair)
    return torch.nn.functional.pad(x, flat)

kernel_name = 'concat_heads__gqa_block_cached__mha_block_cached__near_ridge'

def setup_inputs():

    _w = (lambda a: (lambda t: t.to(torch.bfloat16) if t.is_floating_point() else t)(torch.as_tensor(a)))
    def _A_setup():
        B, Sq, D = 8, 128, 448
        Hq, Hkv, Sk, Dh = 16, 8, 512, 256
        assert Hq % Hkv == 0, (Hq, Hkv)
        return {
            "x": _w((lambda *s: torch.randn(*s, dtype=torch.bfloat16) * 0.8)(B, Sq, D)),
            "k_cache": _w((lambda *s: torch.randn(*s, dtype=torch.bfloat16) * 0.8)(B, Hkv, Sk, Dh)),
            "v_cache": _w((lambda *s: torch.randn(*s, dtype=torch.bfloat16) * 0.05)(B, Hkv, Sk, Dh)),
            "wq": _w((lambda *s: torch.randn(*s, dtype=torch.bfloat16) * 0.8)(D, Hq * Dh) * (D ** -0.5)),
            "wo": _w((lambda *s: torch.randn(*s, dtype=torch.bfloat16) * 0.05)(Hq * Dh, D) * ((Hq * Dh) ** -0.5)),
        }
    _A_in = _A_setup()

    def _B_setup():
        B, Sq, D = 8, 128, 448
        H, Sk, Dh = 16, 512, 256
        return {
            "x": _w((lambda *s: torch.randn(*s, dtype=torch.bfloat16) * 0.8)(B, Sq, D)),
            "k_cache": _w((lambda *s: torch.randn(*s, dtype=torch.bfloat16) * 0.8)(B, H, Sk, Dh)),
            "v_cache": _w((lambda *s: torch.randn(*s, dtype=torch.bfloat16) * 0.05)(B, H, Sk, Dh)),
            "wq": _w((lambda *s: torch.randn(*s, dtype=torch.bfloat16) * 0.8)(D, H * Dh) * (D ** -0.5)),
            "wo": _w((lambda *s: torch.randn(*s, dtype=torch.bfloat16) * 0.05)(H * Dh, D) * ((H * Dh) ** -0.5)),
        }
    _B_in = _B_setup()

    return {
        "A_x": _A_in["x"],
        "A_k_cache": _A_in["k_cache"],
        "A_v_cache": _A_in["v_cache"],
        "A_wq": _A_in["wq"],
        "A_wo": _A_in["wo"],
        "B_x": _B_in["x"],
        "B_k_cache": _B_in["k_cache"],
        "B_v_cache": _B_in["v_cache"],
        "B_wq": _B_in["wq"],
        "B_wo": _B_in["wo"],
    }

def reference(A_x, A_k_cache, A_v_cache, A_wq, A_wo, B_x, B_k_cache, B_v_cache, B_wq, B_wo):
    def _A_ref(x, k_cache, v_cache, wq, wo):
        B, Sq, D = x.shape
        Hq, Dh = 16, 256
        Hkv = k_cache.shape[1]
        rep = Hq // Hkv
        q = (lambda x, *d: x.permute(*d))((x @ wq).reshape(B, Sq, Hq, Dh), 0, 2, 1, 3)
        k = (lambda x, n, axis: torch.repeat_interleave(x, n, dim=axis))(k_cache, rep, axis=1)
        v = (lambda x, n, axis: torch.repeat_interleave(x, n, dim=axis))(v_cache, rep, axis=1)
        scores = torch.einsum("bhqd,bhkd->bhqk", q, k) * (Dh ** -0.5)
        p = _softmax(scores, axis=-1)
        o = torch.einsum("bhqk,bhkd->bhqd", p, v)
        return (lambda x, *d: x.permute(*d))(o, 0, 2, 1, 3).reshape(B, Sq, Hq * Dh) @ wo

    def _B_ref(x, k_cache, v_cache, wq, wo):
        B, Sq, D = x.shape
        H, Dh = 16, 256
        q = (lambda x, *d: x.permute(*d))((x @ wq).reshape(B, Sq, H, Dh), 0, 2, 1, 3)
        scores = torch.einsum("bhqd,bhkd->bhqk", q, k_cache) * (Dh ** -0.5)
        p = _softmax(scores, axis=-1)
        o = torch.einsum("bhqk,bhkd->bhqd", p, v_cache)
        return (lambda x, *d: x.permute(*d))(o, 0, 2, 1, 3).reshape(B, Sq, H * Dh) @ wo

    a = _A_ref(A_x, A_k_cache, A_v_cache, A_wq, A_wo)
    b = _B_ref(B_x, B_k_cache, B_v_cache, B_wq, B_wo)
    return torch.concatenate([a, b], axis=-1)
```

```python
NAME = "concat_heads__gqa_block_cached__mha_block_cached__near_ridge"

class Asm:
    def __init__(self):
        self.lines = []
        self.lab = 0
    def __call__(self, s):
        for l in s.split("\n"):
            l = l.strip()
            if l:
                self.lines.append(("" if l.endswith(":") else "    ") + l)
    def label(self, base="L"):
        self.lab += 1
        return f"{base}_{self.lab}"
    def text(self):
        return "\n".join(self.lines) + "\n"

def kernel_wrap(label, body, vgpr=512, accum=256, sgpr=96):
    return f""".globl {label}
.p2align 8
.type {label},@function
{label}:
{body}    s_endpgm
"""

def kd(label, vgpr=512, accum=256, sgpr=96):
    return f""".p2align 6
.amdhsa_kernel {label}
  .amdhsa_next_free_vgpr {vgpr}
  .amdhsa_next_free_sgpr {sgpr}
  .amdhsa_accum_offset {accum}
  .amdhsa_group_segment_fixed_size 0
  .amdhsa_kernarg_size 104
  .amdhsa_user_sgpr_count 2
  .amdhsa_user_sgpr_kernarg_segment_ptr 1
  .amdhsa_system_sgpr_workgroup_id_x 1
.end_amdhsa_kernel
"""

def file_wrap(launch_lines, kernels):
    s = "\n".join(launch_lines) + "\n"
    s += '.amdgcn_target "amdgcn-amd-amdhsa--gfx950"\n.text\n'
    for (label, body, v, a, sg) in kernels:
        s += kernel_wrap(label, body)
    s += '.section .rodata,"a"\n'
    for (label, body, v, a, sg) in kernels:
        s += kd(label, v, a, sg)
    return s
```

```python
import re

class I:
    __slots__ = ("t", "k", "m")
    def __init__(self, t, k="", m=None):
        self.t = t; self.k = k; self.m = m
    def __repr__(self): return f"I({self.t!r},{self.k},{self.m})"

class Trace:
    def __init__(self):
        self.tr = []
        self.vm = []
        self.lg = []
        self.lg_done = 0
        self.vm_done = 0
    def e(self, s, k="", m=None):
        for l in s.split("\n"):
            l = l.split(";")[0].strip()
            if l: self.tr.append(I(l, k, m))
    def vmem(self, s, tag):
        self.tr.append(I(s.strip(), "vm", tag)); self.vm.append(tag)
    def vmwait(self, tags):
        if isinstance(tags, str): tags = [tags]
        last = max((i for i, t in enumerate(self.vm) if t in tags), default=-1)
        assert last >= 0, tags
        n = len(self.vm) - 1 - last
        self.tr.append(I("", "vmwait", min(n, 63)))
    def lds(self, s, tgt):
        self.tr.append(I(s.strip(), "lds", tgt)); self.lg.append(tgt)
    def lgwait(self, upto, force=False):
        last = max((i for i, t in enumerate(self.lg) if t <= upto), default=-1)
        if last < self.lg_done and not force: return
        n = len(self.lg) - 1 - last
        assert n <= 15, n
        self.lg_done = last + 1
        self.tr.append(I("", "lgwait", n))
    def lgall(self):
        self.lg_done = len(self.lg); self.tr.append(I("", "lgwait", 0))
    def mark(self, kind, name, it=None):
        self.tr.append(I("", kind, (name, it)))
    def item(self, x):
        if callable(x): x()
        elif isinstance(x, (list, tuple)):
            for y in x: self.item(y)
        else: self.e(x)

    def fold(self):
        segs = []
        cur = (None, None, [])
        for ins in self.tr:
            if ins.k == "loop_it":
                segs.append(cur); cur = (ins.m[0], ins.m[1], [])
            elif ins.k == "loop_end":
                segs.append(cur); cur = (None, None, [])
            else: cur[2].append(ins)
        segs.append(cur)
        loops = {}
        for name, it, body in segs:
            if name: loops.setdefault(name, []).append(body)
        for name, bodies in loops.items():
            n = len(bodies[0])
            for b in bodies:
                assert len(b) == n, (name, n, len(b))
            for p in range(n):
                ks = {b[p].k for b in bodies}; assert len(ks) == 1, (name, p, [b[p] for b in bodies])
                if bodies[0][p].k in ("vmwait", "lgwait"):
                    mn = min(b[p].m for b in bodies)
                    for b in bodies: b[p].m = mn
                else:
                    ts = {b[p].t for b in bodies}; assert len(ts) == 1, (name, p, ts)
        for ins in self.tr:
            if ins.k == "vmwait": ins.t = f"s_waitcnt vmcnt({ins.m})"
            if ins.k == "lgwait": ins.t = f"s_waitcnt lgkmcnt({ins.m})"
        out = []; seen = set()
        for name, it, body in segs:
            if name:
                if name in seen: continue
                seen.add(name)
            for ins in body:
                out.append(ins.t if ins.t.endswith(":") or ins.t.startswith(".") else "    " + ins.t)
        lin = [i for i in self.tr if i.t and not i.t.endswith(":") and not i.t.startswith(".")]
        return out, lin

def _regs(op):
    op = op.strip()
    m = re.fullmatch(r"(-|abs\()?([vas])(\d+)\)?", op)
    if m: return {(m.group(2), int(m.group(3)))}
    m = re.fullmatch(r"(-)?([vas])\[(\d+):(\d+)\]", op)
    if m: return {(m.group(2), r) for r in range(int(m.group(3)), int(m.group(4)) + 1)}
    if op == "vcc": return {("s", "vcc")}
    if op == "m0": return {("s", "m0")}
    if op == "exec": return {("s", "exec")}
    return set()

TRANS = ("v_exp_f32", "v_log_f32", "v_rcp_f32", "v_rsq_f32", "v_sqrt_f32")

def decode(t):
    parts = t.split(None, 1)
    op = parts[0]
    ops = []
    if len(parts) > 1:
        rest = parts[1]
        ops = [o.strip() for o in re.split(r",\s*(?![^\[]*\])", rest)]
        ops = [o.split()[0] if o and not o.startswith("abs") else o for o in ops]
    R = [_regs(o) for o in ops]
    d = dict(op=op, cls="other", wr=set(), rd=set(), srcc=set(), ab=set(), sdata=set())
    if op.startswith("v_mfma"):
        d.update(cls="mfma", wr=R[0], rd=R[1] | R[2] | R[3], srcc=R[3], ab=R[1] | R[2], passes=8 if "32x32" in op else 4)
    elif op.startswith("v_cmp"):
        d.update(cls="valu", wr=R[0], rd=set().union(*R[1:]))
    elif op.startswith("v_readfirstlane") or op.startswith("v_readlane"):
        d.update(cls="valu", wr=R[0], rd=set().union(*R[1:]), lane=True)
    elif op.startswith("v_permlane"):
        d.update(cls="valu", wr=R[0] | R[1], rd=R[0] | R[1], perm=True)
    elif op.startswith("v_"):
        rd = set().union(*R[1:]) if len(R) > 1 else set()
        if op.startswith(("v_fmac", "v_dot2c")): rd |= R[0]
        if op.startswith("v_cndmask") and len(R) == 3: rd |= {("s", "vcc")}
        d.update(cls="valu", wr=R[0], rd=rd, trans=op.replace("_e32", "").replace("_e64", "") in TRANS)
    elif op.startswith("ds_read"):
        d.update(cls="ds", wr=R[0], rd=R[1])
    elif op.startswith("ds_write"):
        d.update(cls="ds", rd=set().union(*R))
    elif op.startswith(("buffer_load", "global_load")):
        if t.rstrip().endswith(" lds"):
            d.update(cls="vmem", rd=set().union(*R) | {("s", "m0")}, dma=True)
        else:
            d.update(cls="vmem", wr=R[0], rd=set().union(*R[1:]))
    elif op.startswith("buffer_store"):
        d.update(cls="vmem", rd=set().union(*R), sdata=R[0] if ("x4" in op or "x3" in op) else set())
    elif op.startswith("global_store"):
        d.update(cls="vmem", rd=set().union(*R), sdata=R[1] if ("x4" in op or "x3" in op) else set())
    elif op.startswith(("global_atomic", "buffer_atomic")):
        d.update(cls="vmem", rd=set().union(*R))
    elif op == "s_nop":
        d.update(cls="nop", n=int(ops[0], 0) + 1)
    elif op.startswith("s_"):
        if op.startswith(("s_cmp", "s_cbranch", "s_branch", "s_waitcnt", "s_barrier", "s_setprio", "s_sleep", "s_endpgm", "s_setpc")):
            d.update(cls="salu", rd=set().union(*R) if R else set())
        else:
            d.update(cls="salu", wr=R[0] if R else set(), rd=set().union(*R[1:]) if len(R) > 1 else set())
    return d

def check_hazards(lin, verbose=True):
    D = [decode(i.t) for i in lin]
    errs = []
    for j, c in enumerate(D):
        dist = 0
        for i in range(j - 1, max(-1, j - 24), -1):
            p = D[i]
            need = 0; why = ""
            vw = {r for r in p["wr"] if r[0] in "va"}
            sw = {r for r in p["wr"] if r[0] == "s"}
            call = c["rd"] | c["wr"]
            if p["cls"] == "valu":
                if c["cls"] == "mfma" and vw & c["rd"]: need, why = 2, "valu->mfma"
                if c.get("perm") and vw & c["rd"]: need, why = max(need, 2), "valu->permlane"
                if c.get("lane") and vw & c["rd"]: need, why = max(need, 1), "valu->readlane"
                if p.get("trans") and c["cls"] in ("valu", "mfma") and not c.get("trans") and vw & c["rd"]: need, why = max(need, 1), "trans->valu"
                if sw and c["cls"] == "vmem" and sw & c["rd"]: need, why = max(need, 5), "valu sgpr->vmem"
                if sw and c["cls"] == "valu" and sw & c["rd"]: need, why = max(need, 2), "valu sgpr->valu"
            if p["cls"] == "mfma":
                big = {8: 12, 4: 8}[p["passes"]]
                if c["cls"] == "mfma":
                    if p["wr"] & c["ab"]: need, why = big, "mfma D->AB"
                    elif p["wr"] & c["srcc"] and not (p["wr"] == c["srcc"] and p["passes"] == c["passes"]): need, why = big - 2, "mfma D->C overlap"
                    elif p["wr"] & c["wr"] and p["wr"] != c["srcc"]: need, why = big - 2, "mfma WAW"
                elif c["cls"] in ("valu", "ds", "vmem") and p["wr"] & call: need, why = big, "mfma D->valu/mem"
                if c["cls"] == "valu" and p["srcc"] & c["wr"]: need, why = max(need, {8: 7, 4: 3}[p["passes"]]), "mfma C WAR"
            if p["cls"] == "salu" and ("s", "m0") in p["wr"] and c.get("dma"): need, why = max(need, 1), "m0->dma"
            if p["sdata"] and p["sdata"] & c["wr"] and c["cls"] in ("valu", "mfma"): need, why = max(need, 2), "store data WAR"
            if need > dist:
                errs.append((j, why, need, dist, lin[i].t, lin[j].t))
            dist += p.get("n", 1)
            if dist >= 20: break
    if verbose:
        seen = set()
        for e in errs:
            key = e[1:]
            if key in seen: continue
            seen.add(key); print("HAZARD", e)
    return errs
```

```python
import sys, struct, math
from fw import *
from asmlib import NAME, file_wrap

SLOT = 17408; KS = 1040; VS = 1088; PAIR = 2 * SLOT
def slotA(n): return (n % 4) * PAIR
def slotB(n): return (n % 4) * PAIR + SLOT
def f2u(x): return struct.unpack("<I", struct.pack("<f", x))[0]

vK, vV = 16, 17
vQ = [18, 19, 20]
vWo = [21, 22]
vSt = 23
voA = [24, 25, 26, 27]; voB = [28, 29, 30, 31]; voW = [32, 33, 34, 35]; vX = 36
T = list(range(40, 54))
L = [54, 55]; P = 56; E = 64; NM = 80; S = [96, 112]; O = 128
voQ = [96, 97, 98, 99]
aX = 0; aF = 112; aQ = 144
NF = 8
sX, sWQ, sA, sB, sWO, sP = 4, 8, 12, 16, 20, 24
soA, soB, inA, inB, sLA, sLB, sCnt, sThr = 28, 29, 30, 31, 32, 33, 34, 35
sC = 36
sWpA, sWpB, sTog, sSt, sStP, sTmp, sInc = 38, 39, 42, 43, 44, 45, 46
sRet = 40
sStamp = 60

def vr(b, n): return f"v[{b}:{b+n-1}]"
def ar(b, n): return f"a[{b}:{b+n-1}]"
def srd(b): return f"s[{b}:{b+3}]"

def gen(D=6, stamps=False, dbg=None, kvnt=" nt", wnt="", xnt="", stfl=" sc1", rdfl=" nt"):
    t = Trace()
    nst = [0]
    def stamp():
        if stamps:
            t.e(f"s_memtime s[{sStamp+2*nst[0]}:{sStamp+2*nst[0]+1}]"); nst[0] += 1
    t.e("s_cmp_ge_u32 s2, 256\ns_cbranch_scc1 L_end")
    if stamps: t.e("s_memrealtime s[56:57]")
    stamp()
    t.e(f"""
    s_and_b32 s47, s2, 7
    s_lshr_b32 s48, s2, 3
    s_and_b32 s49, s48, 1
    s_bfe_u32 s50, s48, 0x10001
    s_lshr_b32 s51, s48, 2
    s_lshl_b32 s52, s47, 1
    s_or_b32 s52, s52, s49
    s_mul_i32 s53, s50, 40
    s_add_u32 s54, s0, s53
    s_addc_u32 s55, s1, 0
    s_load_dwordx2 s[4:5], s[54:55], 0
    s_load_dwordx2 s[8:9], s[54:55], 24
    s_load_dwordx2 s[12:13], s[54:55], 8
    s_load_dwordx2 s[16:17], s[54:55], 16
    s_load_dwordx2 s[20:21], s[54:55], 32
    s_load_dwordx2 s[24:25], s[0:1], 96
    s_getpc_b64 s[40:41]
    L_pc:
    v_lshlrev_b32 v2, 7, v0
    v_min_u32 v2, L_code_end-L_pc-4, v2
    """)
    t.vmem("global_load_dword v3, v2, s[40:41]", "code")
    t.e(f"""
    v_lshrrev_b32 v2, 6, v0
    v_and_b32 v1, 63, v0
    v_readfirstlane_b32 s3, v2
    v_and_b32 v4, 31, v1
    v_lshrrev_b32 v5, 5, v1
    v_and_b32 v6, 15, v1
    v_bfe_u32 v7, v1, 4, 1
    """)
    t.e(f"""
    v_lshl_add_u32 v8, v2, 5, v4
    v_mul_u32_u24 v8, 896, v8
    v_lshl_add_u32 v{vX}, v5, 4, v8
    """)
    t.e(f"""
    v_lshlrev_b32 v8, 2, v5
    v_lshl_add_u32 v8, v2, 3, v8
    v_lshlrev_b32 v9, 4, v4
    v_lshl_add_u32 v{voQ[0]}, v8, 13, v9
    v_add_u32 v{voQ[1]}, 0x2000, v{voQ[0]}
    v_add_u32 v{voQ[2]}, 0x4000, v{voQ[0]}
    v_add_u32 v{voQ[3]}, 0x6000, v{voQ[0]}
    s_mul_i32 s{sWpA}, s3, {4*KS}
    s_mul_i32 s{sWpB}, s3, {4*VS}
    s_mul_i32 s47, s51, 114688
    s_lshl_b32 s48, s52, 9
    s_waitcnt lgkmcnt(0)
    s_add_u32 s4, s4, s47
    s_addc_u32 s5, s5, 0
    s_and_b32 s5, s5, 0xffff
    s_mov_b32 s6, 114688
    s_mov_b32 s7, 0x20000
    s_add_u32 s8, s8, s48
    s_addc_u32 s9, s9, 0
    s_and_b32 s9, s9, 0xffff
    s_sub_u32 s10, {448*8192}, s48
    s_mov_b32 s11, 0x20000
    """)
    wq_slot = {0: slotB(0), 1: slotA(2), 2: slotB(1), 3: slotA(3), 4: slotB(2), 5: slotB(3),
               6: slotA(0), 7: slotA(1), 8: slotB(0), 9: slotA(2), 10: slotB(1), 11: slotA(3), 12: slotB(2), 13: slotB(3)}
    def dma_items(tag, sr, vo, so, sbase, cbase, stride, fl, post=()):
        def m(k): return f"s_add_u32 m0, s{sbase}, {cbase + k*stride}"
        def ld(k): return lambda: t.vmem(f"buffer_load_dwordx4 v{vo[k]}, {srd(sr)}, s{so} offen{fl} lds", tag)
        return [[m(0)], [ld(0), m(1)], [ld(1), m(2)], [ld(2), m(3)], [ld(3)] + list(post)]
    def dma_now(items):
        for g in items:
            t.item(g)
            if g is not items[-1]: t.e("s_nop 0")
    def wq_items(n):
        it = dma_items(f"wq{n}", sWQ, voQ, sTmp, sWpB, wq_slot[n], VS, wnt)
        it[0] = [f"s_mov_b32 s{sTmp}, {n*262144}"] + it[0]
        return it
    def xload(s): t.vmem(f"buffer_load_dwordx4 {ar(aX+4*s,4)}, v{vX}, {srd(sX)}, 0 offen offset:{s*32}{xnt}", f"x{s}")
    for g in range(4):
        for s in range(4*g, 4*g+4): xload(s)
        dma_now(wq_items(2*g)); dma_now(wq_items(2*g+1))
    for s in range(16, 28): xload(s)
    t.e(f"""
    s_lshl_b32 s47, s51, 4
    s_add_u32 s47, s47, s52
    s_sub_u32 s48, 1, s50
    s_lshr_b32 s48, s47, s48
    s_lshl_b32 s48, s48, 18
    s_add_u32 s12, s12, s48
    s_addc_u32 s13, s13, 0
    s_and_b32 s13, s13, 0xffff
    s_mov_b32 s14, 0x40000
    s_mov_b32 s15, 0x20000
    s_add_u32 s16, s16, s48
    s_addc_u32 s17, s17, 0
    s_and_b32 s17, s17, 0xffff
    s_mov_b32 s18, 0x40000
    s_mov_b32 s19, 0x20000
    s_mul_i32 s48, s52, 229376
    s_add_u32 s20, s20, s48
    s_addc_u32 s21, s21, 0
    s_and_b32 s21, s21, 0xffff
    s_mov_b32 s22, 229376
    s_mov_b32 s23, 0x20000
    s_mov_b32 s58, s24
    s_mov_b32 s59, s25
    s_lshl_b32 s48, s50, 7
    s_add_u32 s47, s47, s48
    s_mul_i32 s48, s47, 114688
    s_add_u32 s24, s24, s48
    s_addc_u32 s25, s25, 0
    s_and_b32 s25, s25, 0xffff
    s_mov_b32 s26, 114688
    s_mov_b32 s27, 0x20000
    s_mov_b32 s{soA}, 0
    s_mov_b32 s{soB}, 0
    s_mov_b32 s{inA}, 16384
    s_mov_b32 s{inB}, 16384
    s_mov_b32 s{sThr}, {f2u(65536.0)}
    s_mov_b32 s{sC}, {f2u(math.log2(math.e)/16)}
    s_mov_b32 s{sC+1}, {f2u(math.log2(math.e)/16)}
    s_mov_b32 s{sTog}, {2*PAIR}
    s_mul_i32 s{sSt}, s3, 28672
    s_mov_b32 s{sStP}, 0x7ff00000
    v_lshl_add_u32 v{voA[0]}, v8, 9, v9
    v_add_u32 v{voA[1]}, 512, v{voA[0]}
    v_add_u32 v{voA[2]}, 1024, v{voA[0]}
    v_add_u32 v{voA[3]}, 1536, v{voA[0]}
    v_mov_b32 v{voB[0]}, v{voA[0]}
    v_mov_b32 v{voB[1]}, v{voA[1]}
    v_mov_b32 v{voB[2]}, v{voA[2]}
    v_mov_b32 v{voB[3]}, v{voA[3]}
    v_lshlrev_b32 v{vSt}, 4, v1
    """)
    t.e(f"""
    v_lshrrev_b32 v8, 3, v1
    v_lshl_add_u32 v8, v2, 5, v8
    v_mul_u32_u24 v8, 896, v8
    v_and_b32 v9, 7, v1
    v_lshlrev_b32 v10, 2, v7
    v_xor_b32 v9, v9, v10
    v_lshl_add_u32 v{voW[0]}, v9, 4, v8
    v_add_u32 v{voW[1]}, {8*896}, v{voW[0]}
    v_add_u32 v{voW[2]}, {16*896}, v{voW[0]}
    v_add_u32 v{voW[3]}, {24*896}, v{voW[0]}
    """)
    t.e(f"""
    v_and_b32 v8, 3, v4
    v_lshrrev_b32 v9, 3, v4
    v_lshl_add_u32 v8, v9, 2, v8
    v_mul_u32_u24 v8, {KS}, v8
    v_bfe_u32 v9, v4, 2, 1
    v_lshl_add_u32 v8, v9, 9, v8
    v_lshl_add_u32 v{vK}, v5, 4, v8
    """)
    t.e(f"""
    v_lshrrev_b32 v8, 2, v6
    v_mul_u32_u24 v9, {VS}, v8
    v_lshl_add_u32 v9, v7, 5, v9
    v_and_b32 v10, 3, v6
    v_lshl_add_u32 v11, v10, 3, v9
    v_lshl_add_u32 v11, v5, 9, v11
    v_add_u32 v{vV}, {SLOT}, v11
    v_and_b32 v11, 1, v6
    v_bfe_u32 v12, v6, 1, 1
    v_lshl_add_u32 v10, v11, 1, v12
    v_lshl_add_u32 v11, v10, 3, v9
    v_mul_u32_u24 v12, 4352, v5
    v_add_u32 v{vQ[0]}, v11, v12
    v_add_u32 v{vQ[1]}, {3*SLOT}, v{vQ[0]}
    v_add_u32 v{vQ[2]}, {6*SLOT}, v{vQ[0]}
    v_lshl_add_u32 v8, v5, 2, v8
    v_lshlrev_b32 v8, 7, v8
    v_lshl_add_u32 v8, v7, 5, v8
    v_lshl_add_u32 v8, v10, 3, v8
    v_lshrrev_b32 v9, 3, v6
    v_lshl_add_u32 v{vWo[0]}, v9, 6, v8
    v_xor_b32 v{vWo[1]}, 64, v{vWo[0]}
    """)

    def tr2(addr, o0, o1):
        return lambda f: [f"ds_read_b64_tr_b16 {ar(f,2)}, v{addr} offset:{o0}", f"ds_read_b64_tr_b16 {ar(f+2,2)}, v{addr} offset:{o1}"]
    def b128(addr, o):
        return lambda f: [f"ds_read_b128 {ar(f,4)}, v{addr} offset:{o}"]
    def mf(d, b, c):
        return lambda f: f"v_mfma_f32_32x32x16_bf16 {vr(d,16)}, {ar(f,4)}, {b}, {c}"
    def sync(tag): return [lambda: t.vmwait(tag), "s_barrier"]
    def put(fill, g, items):
        fill.setdefault(g, []).extend(items if isinstance(items, list) else [items])
    def put_dma(fill, items, g0=1, step=1):
        for k, grp in enumerate(items): put(fill, g0 + k * step, grp)

    def kitems(n, sb, cb):
        return dma_items(f"a{n}", sA, voA, soA, sb, cb, KS, kvnt, [f"s_add_u32 s{soA}, s{soA}, s{inA}"])
    def vitems(n, sb, cb):
        return dma_items(f"b{n}", sB, voB, soB, sb, cb, VS, kvnt, [f"s_add_u32 s{soB}, s{soB}, s{inB}"])

    phases = []
    order = [("a",0),("a",1),("b",0),("a",2),("b",1),("a",3),("b",2),("b",3)]
    def kv_static(x):
        k, n = x
        return kitems(n, sWpA, slotA(n)) if k == "a" else vitems(n, sWpB, slotB(n))
    for n in range(14):
        sl = wq_slot[n]; base = vQ[sl // (3*SLOT)]; ob = sl % (3*SLOT)
        m = []
        for ks in range(2):
            for d in range(8):
                c = "0" if (n == 0 and ks == 0) else vr(O+16*d, 16)
                m.append((mf(O+16*d, ar(aX+4*(2*n+ks), 4), c), tr2(base, ob + ks*8704 + d*64, ob + ks*8704 + d*64 + 512)))
        fill = {}
        put(fill, 0, sync(f"wq{n+1}" if n < 13 else "a0"))
        if 1 <= n <= 6: put_dma(fill, wq_items(n + 7), 1, 2)
        if n >= 7: put_dma(fill, kv_static(order[n-7]), 1, 2)
        phases.append(dict(m=m, fill=fill, pre=[]))

    def S_m(buf, ob, first_c):
        return [(mf(S[buf], ar(aQ+4*s, 4), first_c if s == 0 else vr(S[buf], 16)), b128(vK, ob + s*32)) for s in range(16)]
    def PV_m(ob, zero=False):
        m = []
        for s in range(2):
            for d in range(8):
                c = "0" if (zero and s == 0) else vr(O+16*d, 16)
                m.append((mf(O+16*d, vr(P+4*s, 4), c), tr2(vV, ob + 2*s*4352 + d*64, ob + (2*s+1)*4352 + d*64)))
        return m
    N1 = 9
    def sm_exp(buf, r): return f"v_exp_f32 v{E+r}, v{S[buf]+r}"
    def sm_add(buf, r): return f"v_add_f32 v{L[buf]}, v{L[buf] if r else L[1-buf]}, v{E+r}"
    def sm_cvt(r2): return f"v_cvt_pk_bf16_f32 v{P+r2}, v{E+2*r2}, v{E+2*r2+1}"
    def part1(fill, buf, g0=6):
        for r in range(N1):
            put(fill, g0 + r, sm_exp(buf, r))
            if r >= 1: put(fill, g0 + r, sm_add(buf, r-1))
    trams = []
    def check(buf, name):
        trams.append((name, buf))
        return [f"v_cmp_nge_f32 vcc, s{sThr}, v{L[buf]}", f"s_cbranch_vccnz T_{name}", f"B_{name}:"]
    def part2_items(buf):
        it = []
        for r in range(N1, 16):
            g = [sm_exp(buf, r), sm_add(buf, r-1)]
            it.append(g)
        return it
    def part2(fill, buf, name):
        it = part2_items(buf)
        for k, g in enumerate(it): put(fill, 6 + k, g)
        for r2 in range(4): put(fill, 1 + r2, sm_cvt(r2))
        put(fill, 9, sm_cvt(4)); put(fill, 11, sm_cvt(5)); put(fill, 13, [sm_add(buf, 15), sm_cvt(6)]); put(fill, 14, sm_cvt(7))
        put(fill, 15, check(buf, name))

    conv = ["s_nop 7", "s_nop 3", stamp]
    for r in range(0, 128, 8):
        for q in range(4): conv.append(f"v_pk_mul_f32 {vr(O+r+2*q,2)}, {vr(O+r+2*q,2)}, s[{sC}:{sC+1}]")
        for q in range(4): conv.append(f"v_cvt_pk_bf16_f32 v{T[q]}, v{O+r+2*q}, v{O+r+2*q+1}")
        for q in range(4): conv.append(f"v_accvgpr_write_b32 a{aQ+r//2+q}, v{T[q]}")
    conv += ["s_nop 1", stamp]
    fill = {}; put(fill, 0, sync("a1")); put_dma(fill, kv_static(order[7]), 1, 2)
    phases.append(dict(m=S_m(0, 0, "0"), fill=fill, pre=conv))
    pre = ["s_nop 7", "s_nop 3"]
    def rowmax(buf, dst, tmp):
        o = [f"v_max3_f32 v{dst}, v{S[buf]}, v{S[buf]+1}, v{S[buf]+2}"]
        for r in range(3, 15, 2): o.append(f"v_max3_f32 v{dst}, v{dst}, v{S[buf]+r}, v{S[buf]+r+1}")
        o.append(f"v_max_f32 v{dst}, v{dst}, v{S[buf]+15}")
        o += [f"v_mov_b32 v{tmp}, v{dst}", "s_nop 1", f"v_permlane32_swap_b32 v{dst}, v{tmp}", f"v_max_f32 v{dst}, v{dst}, v{tmp}"]
        return o
    pre += rowmax(0, T[0], T[1])
    pre += [f"v_sub_f32 v{NM+r}, 0, v{T[0]}" for r in range(16)]
    pre += [f"v_mov_b32 v{L[1]}, 0", "s_nop 0"]
    fill = {}; put(fill, 0, sync("b0")); put_dma(fill, kitems(4, sWpA, slotA(0)), 1, 1)
    for r in range(16): put(fill, r // 4, f"v_sub_f32 v{S[0]+r}, v{S[0]+r}, v{T[0]}")
    for r in range(16):
        g = 4 + (r * 10) // 16
        put(fill, g, sm_exp(0, r))
        if r >= 1: put(fill, g, sm_add(0, r-1))
        if r >= 2 and r % 2 == 0: put(fill, g, sm_cvt(r//2 - 1))
    put(fill, 14, [sm_add(0, 15), sm_cvt(7)])
    phases.append(dict(m=S_m(1, PAIR, vr(NM, 16)), fill=fill, pre=pre))
    fill = {}; put(fill, 0, sync("a2")); put_dma(fill, kitems(5, sWpA, slotA(1)), 1, 1)
    put(fill, 1, f"v_add_u32 v{vK}, {2*PAIR}, v{vK}")
    put(fill, 2, [f"s_add_u32 s{sLA}, s{sWpA}, {2*PAIR}", f"s_add_u32 s{sLB}, s{sWpB}, {SLOT}", f"s_mov_b32 s{sCnt}, 0"])
    part1(fill, 1)
    phases.append(dict(m=PV_m(0, True), fill=fill, pre=[stamp]))
    for it in range(7):
        j = 2 * it + 1
        fill = {}
        put(fill, 0, [f"s_cmp_ge_u32 s{sCnt}, 5", "s_cbranch_scc1 T_sw", "B_sw:"] + sync(f"b{j}"))
        put_dma(fill, vitems(j+3, sLB, 0), 1, 1); part2(fill, 1, "l1")
        phases.append(dict(m=S_m(0, 0, vr(NM, 16)), fill=fill, pre=[(lambda it=it: t.mark("loop_it", "att", it)), ".p2align 3", "L_att:"]))
        fill = {}; put(fill, 0, sync(f"a{j+2}")); put_dma(fill, kitems(j+5, sLA, 0), 1, 1); part1(fill, 0)
        phases.append(dict(m=PV_m(PAIR), fill=fill, pre=[]))
        fill = {}; put(fill, 0, sync(f"b{j+1}")); put_dma(fill, vitems(j+4, sLB, PAIR), 1, 1); part2(fill, 0, "l0")
        put(fill, 5, [f"v_add_u32 v{vV}, s{sTog}, v{vV}", f"s_add_u32 s{sLB}, s{sLB}, s{sTog}"])
        phases.append(dict(m=S_m(1, PAIR, vr(NM, 16)), fill=fill, pre=[]))
        fill = {}; put(fill, 0, sync(f"a{j+3}" if it < 6 else "b15")); put_dma(fill, kitems(j+6, sLA, PAIR), 1, 1); part1(fill, 1)
        put(fill, 5, [f"v_subrev_u32 v{vK}, s{sTog}, v{vK}", f"s_sub_u32 s{sLA}, s{sLA}, s{sTog}"])
        put(fill, 15, [f"s_sub_u32 s{sTog}, 0, s{sTog}", f"s_add_u32 s{sCnt}, s{sCnt}, 1", f"s_cmp_lt_u32 s{sCnt}, 7", "s_cbranch_scc1 L_att"])
        phases.append(dict(m=PV_m(0), fill=fill, pre=[]))
    dummy1 = S_m(0, 0, "0")

    gidx = [0]
    def run(phases, dummy, first_pre=()):
        ms = []
        for ph in phases:
            for k, m in enumerate(ph["m"]): ms.append((ph, k, m))
        n = len(ms)
        allm = [m for (_, _, m) in ms] + list(dummy)
        g0 = gidx[0]
        def reads(i):
            if i < len(allm):
                for r in allm[i][1](aF + 4 * ((g0 + i) % NF)): t.lds(r, g0 + i)
        for i in range(D): reads(i)
        t.item(list(first_pre))
        for i, (ph, k, m) in enumerate(ms):
            if k == 0: t.item(ph["pre"])
            if i % 2 == 0: t.lgwait(g0 + i + 1, force=True)
            t.e(m[0](aF + 4 * ((g0 + i) % NF)))
            reads(i + D)
            t.item(ph["fill"].get(k, []))
        gidx[0] = g0 + ((n + len(dummy) + NF - 1) // NF) * NF

    t.vmwait("wq0"); t.e("s_barrier"); stamp()
    run(phases, dummy1)
    t.mark("loop_end", "att")
    stamp()
    t.lgall()
    phases = []
    pre = []
    for g in part2_items(1): pre += g
    pre += [sm_cvt(r2) for r2 in range(7)] + [sm_add(1, 15), sm_cvt(7)] + check(1, "fin")
    fill = {}; put(fill, 0, sync("a16")); put_dma(fill, vitems(18, sWpB, slotB(2)), 1, 1)
    put(fill, 6, [f"v_mov_b32 v{T[1]}, v{L[1]}"]); put(fill, 7, [f"v_permlane32_swap_b32 v{L[1]}, v{T[1]}"])
    put(fill, 8, [f"v_add_f32 v{T[0]}, v{L[1]}, v{T[1]}"]); put(fill, 9, [f"v_rcp_f32 v{T[2]}, v{T[0]}"])
    put(fill, 10, [f"v_mov_b32 v{T[3]}, v{T[2]}"])
    put(fill, 11, [f"s_mov_b32 s{sLA}, s{sWpA}", f"s_add_u32 s{sLB}, s{sWpB}, {slotB(3)}", f"s_mov_b32 s{sCnt}, 0"])
    phases.append(dict(m=PV_m(PAIR), fill=fill, pre=[]))
    first_pre = pre
    assert T[2] % 2 == 0
    norm = ["s_nop 7", "s_nop 3", stamp]
    for r in range(0, 128, 8):
        for q in range(4): norm.append(f"v_pk_mul_f32 {vr(O+r+2*q,2)}, {vr(O+r+2*q,2)}, {vr(T[2],2)}")
        for q in range(4): norm.append(f"v_cvt_pk_bf16_f32 v{O+r//2+q}, v{O+r+2*q}, v{O+r+2*q+1}")
    norm += ["s_nop 1", stamp]
    def out_m(par):
        m = []
        st = KS if par == 0 else VS; ob = 0 if par == 0 else SLOT
        for nb in range(2):
            for s in range(8):
                c = "0" if (par == 0 and s == 0) else vr(S[nb], 16)
                m.append((mf(S[nb], vr(O + 4*(8*par+s), 4), c), tr2(vWo[nb], ob + 2*s*st, ob + (2*s+1)*st)))
        return m
    def ocvt(nb, r2): return f"v_cvt_pk_bf16_f32 v{E+8*nb+r2}, v{S[nb]+2*r2}, v{S[nb]+2*r2+1}"
    def ostore(nb, hh, so): return lambda: t.vmem(f"buffer_store_dwordx4 {vr(E+8*nb+4*hh,4)}, v{vSt}, {srd(sP)}, s{so} offen offset:{nb*2048+hh*1024}{stfl}", "st")
    for i in range(7):
        fill = {}
        put(fill, 0, [f"s_cmp_ge_u32 s{sCnt}, 4", f"s_cselect_b32 s{sB+2}, 0, s{sB+2}"] + sync(f"b{16+i}"))
        put_dma(fill, vitems(19+i, sLB, 0), 8, 1)
        for r2 in range(8): put(fill, 3 + r2 // 2, ocvt(1, r2))
        put(fill, 6, ostore(1, 0, sStP)); put(fill, 7, ostore(1, 1, sStP))
        phases.append(dict(m=out_m(0), fill=fill, pre=(norm if i == 0 else []) + [(lambda i=i: t.mark("loop_it", "out", i)), ".p2align 3", "L_out:"]))
        fill = {}
        put(fill, 0, [f"s_cmp_ge_u32 s{sCnt}, 3", f"s_cselect_b32 s{sA+2}, 0, s{sA+2}"] + sync(f"a{17+i}"))
        put_dma(fill, kitems(20+i, sLA, 0), 1, 1)
        put(fill, 6, [f"s_add_u32 s{sCnt}, s{sCnt}, 1", f"s_and_b32 s{sTmp}, s{sCnt}, 3", f"s_cselect_b32 s{sInc}, s47, s48"])
        put(fill, 7, [f"v_add_u32 v{vWo[0]}, s{sInc}, v{vWo[0]}", f"s_add_u32 s{sLB}, s{sLA}, s49", f"s_add_u32 s{sLA}, s{sLA}, s{sInc}"])
        put(fill, 10, [f"v_add_u32 v{vWo[1]}, s{sInc}, v{vWo[1]}"])
        for r2 in range(8): put(fill, 11 + r2 // 2, ocvt(0, r2))
        put(fill, 14, ostore(0, 0, sSt))
        put(fill, 15, [ostore(0, 1, sSt), f"s_mov_b32 s{sStP}, s{sSt}", f"s_add_u32 s{sSt}, s{sSt}, 4096", f"s_cmp_lt_u32 s{sCnt}, 7", "s_cbranch_scc1 L_out"])
        phases.append(dict(m=out_m(1), fill=fill, pre=[]))
    t.e(f"s_mov_b32 s47, {PAIR}\ns_mov_b32 s48, {(-3*PAIR) & 0xffffffff}\ns_sub_u32 s49, s{sWpB}, s{sWpA}\ns_add_u32 s49, s49, {SLOT}")
    run(phases, out_m(0), first_pre)
    t.mark("loop_end", "out")
    t.e("s_nop 7")
    for r2 in range(8): t.e(ocvt(1, r2))
    t.item([ostore(1, 0, sStP), ostore(1, 1, sStP)])
    stamp()
    if stamps:
        t.e("s_waitcnt vmcnt(0)"); stamp()
        t.e("s_memrealtime s[54:55]\ns_waitcnt lgkmcnt(0)")
        t.e(f"""
        s_lshl_b32 s47, s2, 2
        s_add_u32 s47, s47, s3
        s_lshl_b32 s47, s47, 7
        s_add_u32 s47, s47, 0x8000000
        s_add_u32 s58, s58, s47
        s_addc_u32 s59, s59, 0
        v_mov_b32 v2, 0
        s_mov_b64 exec, 1
        """)
        regs = [56, 54] + [sStamp + 2*k for k in range(nst[0])]
        assert len(regs) <= 16
        for k, r in enumerate(regs):
            t.e(f"v_mov_b32 v4, s{r}\nv_mov_b32 v5, s{r+1}\nglobal_store_dwordx2 v2, v[4:5], s[58:59] offset:{8*k}\ns_nop 1")
    t.e("L_end:\ns_endpgm")
    main_lin_end = len(t.tr)
    t.e(f"""
    T_sw:
    s_cmp_eq_u32 s{sCnt}, 6
    s_cbranch_scc1 T_sw2
    s_mov_b32 s{sA}, s{sWO}
    s_mov_b32 s{sA+1}, s{sWO+1}
    s_mov_b32 s{sA+2}, s{sWO+2}
    s_mov_b32 s{soA}, 0
    s_mov_b32 s{inA}, 128
    """ + "\n".join(f"v_mov_b32 v{voA[k]}, v{voW[k]}" for k in range(4)) + f"""
    s_branch B_sw
    T_sw2:
    s_mov_b32 s{sB}, s{sWO}
    s_mov_b32 s{sB+1}, s{sWO+1}
    s_mov_b32 s{sB+2}, s{sWO+2}
    s_mov_b32 s{soB}, 114688
    s_mov_b32 s{inB}, 128
    """ + "\n".join(f"v_mov_b32 v{voB[k]}, v{voW[k]}" for k in range(4)) + """
    s_branch B_sw
    """)
    seen = set()
    for name, buf in trams:
        if name in seen: continue
        seen.add(name)
        t.e(f"T_{name}:\ns_call_b64 s[{sRet}:{sRet+1}], R_{buf}\ns_branch B_{name}")
    for buf in range(2):
        t.e(f"R_{buf}:\ns_nop 15")
        t.e("\n".join(rowmax(buf, T[0], T[1])))
        t.e(f"v_max_f32 v{T[0]}, 0, v{T[0]}\nv_exp_f32 v{T[2]}, -v{T[0]}")
        for r in range(16): t.e(f"v_sub_f32 v{NM+r}, v{NM+r}, v{T[0]}")
        for r in range(16): t.e(f"v_sub_f32 v{S[1-buf]+r}, v{S[1-buf]+r}, v{T[0]}")
        for r in range(16): t.e(f"v_sub_f32 v{S[buf]+r}, v{S[buf]+r}, v{T[0]}")
        for r in range(16): t.e(sm_exp(buf, r))
        t.e(f"v_mul_f32 v{L[1-buf]}, v{L[1-buf]}, v{T[2]}")
        for r in range(16): t.e(sm_add(buf, r))
        for r2 in range(8): t.e(sm_cvt(r2))
        for r in range(128): t.e(f"v_mul_f32 v{O+r}, v{O+r}, v{T[2]}")
        t.e(f"s_nop 1\ns_setpc_b64 s[{sRet}:{sRet+1}]")
    lines, lin = t.fold()
    errs = check_hazards(lin)
    k1 = "\n".join(lines) + "\n"

    r = Trace()
    r.e(f"""
    s_cmp_ge_u32 s2, 448
    s_cbranch_scc1 L_end2
    s_load_dwordx2 s[4:5], s[0:1], 96
    s_load_dwordx2 s[8:9], s[0:1], 80
    s_mul_i32 s12, s2, {(65536 + 27)//28}
    s_lshr_b32 s12, s12, 16
    s_mul_i32 s13, s12, 28
    s_sub_u32 s13, s2, s13
    s_mul_i32 s14, s13, {(65536 + 6)//7}
    s_lshr_b32 s14, s14, 16
    s_mul_i32 s15, s14, 7
    s_sub_u32 s15, s13, s15
    s_mul_i32 s16, s12, {16*114688}
    s_lshl_b32 s17, s13, 12
    s_add_u32 s16, s16, s17
    v_lshlrev_b32 v1, 4, v0
    s_waitcnt lgkmcnt(0)
    s_and_b32 s5, s5, 0xffff
    s_mov_b32 s6, {256*114688}
    s_mov_b32 s7, 0x20000
    """)
    for k in range(16):
        r.vmem(f"buffer_load_dwordx4 {vr(16+4*k,4)}, v1, s[4:7], s16 offen{rdfl}", f"p{k}")
        if k < 15: r.e("s_add_u32 s16, s16, 114688")
    r.e(f"""
    s_and_b32 s9, s9, 0xffff
    s_mov_b32 s10, {8*128*896*2}
    s_mov_b32 s11, 0x20000
    s_and_b32 s18, s12, 7
    s_lshr_b32 s19, s12, 3
    s_lshl_b32 s18, s18, 7
    s_lshl_b32 s20, s14, 5
    s_add_u32 s18, s18, s20
    s_mul_i32 s18, s18, 1792
    s_mul_i32 s19, s19, 896
    s_add_u32 s18, s18, s19
    s_lshl_b32 s20, s15, 7
    s_add_u32 s18, s18, s20
    v_and_b32 v2, 31, v0
    v_mul_u32_u24 v2, 1792, v2
    v_lshrrev_b32 v3, 5, v0
    v_lshl_add_u32 v2, v3, 4, v2
    """)
    for k in range(16):
        r.vmwait(f"p{k}")
        for q in range(4):
            src = 16 + 4*k + q
            if k == 0:
                r.e(f"v_lshlrev_b32 v{4+2*q}, 16, v{src}\nv_and_b32 v{5+2*q}, 0xffff0000, v{src}")
            else:
                r.e(f"v_lshlrev_b32 v12, 16, v{src}\nv_and_b32 v13, 0xffff0000, v{src}\nv_pk_add_f32 {vr(4+2*q,2)}, {vr(4+2*q,2)}, v[12:13]")
    for q in range(4): r.e(f"v_cvt_pk_bf16_f32 v{16+q}, v{4+2*q}, v{5+2*q}")
    r.e("buffer_store_dwordx4 v[16:19], v2, s[8:11], s18 offen\nL_end2:")
    lines2, lin2 = r.fold()
    errs += check_hazards(lin2)
    k2 = "\n".join(lines2) + "\n"
    txt = file_wrap([f"; @launch kernel=attn_kernel grid=(256,1,1) block=(256,1,1) lds={8*SLOT}",
                     f"; @launch kernel=red_kernel grid=(448,1,1) block=(256,1,1) lds=0"],
                    [("attn_kernel", k1, 464, 256, 96), ("red_kernel", k2, 80, 80, 32)])
    txt = txt.replace('.section .rodata,"a"', 'L_code_end:\n.section .rodata,"a"')
    assert not errs
    return txt

if __name__ == "__main__":
    open("v1.s", "w").write(gen())
    open("v1_st.s", "w").write(gen(stamps=True))
```

```python
import sys, struct, math
from fw import *
from asmlib import NAME, file_wrap

SLOT = 17408; KS = 1040; VS = 1088; PAIR = 2 * SLOT
def slotA(n): return (n % 4) * PAIR
def slotB(n): return (n % 4) * PAIR + SLOT
def f2u(x): return struct.unpack("<I", struct.pack("<f", x))[0]

vK, vV = 16, 17
vQ = [18, 19, 20]
vWo = [21, 22]
vSt = 23
voA = [24, 25, 26, 27]; voB = [28, 29, 30, 31]; voW = [32, 33, 34, 35]; vX = 36
T = list(range(40, 54))
L = [54, 55]; P = 56; E = 64; NM = 80; S = [96, 112]; O = 128
voQ = [96, 97, 98, 99]
aX = 0; aF = 112; aQ = 144
NF = 8
sX, sWQ, sA, sB, sWO, sP = 4, 8, 12, 16, 20, 24
soA, soB, inA, inB, sLA, sLB, sCnt, sThr = 28, 29, 30, 31, 32, 33, 34, 35
sC = 36
sWpA, sWpB, sTog, sSt, sStP, sTmp, sInc = 38, 39, 42, 43, 44, 45, 46
sRet = 40
sStamp = 60

def vr(b, n): return f"v[{b}:{b+n-1}]"
def ar(b, n): return f"a[{b}:{b+n-1}]"
def srd(b): return f"s[{b}:{b+3}]"

def gen(D=6, stamps=False, dbg=None, kvnt=" nt", wnt="", xnt="", stfl=" sc1", rdfl=" nt"):
    t = Trace()
    nst = [0]
    def stamp():
        if stamps:
            t.e(f"s_memtime s[{sStamp+2*nst[0]}:{sStamp+2*nst[0]+1}]"); nst[0] += 1
    t.e("s_cmp_ge_u32 s2, 256\ns_cbranch_scc1 L_end")
    if stamps: t.e("s_memrealtime s[56:57]")
    stamp()
    t.e(f"""
    s_and_b32 s47, s2, 7
    s_lshr_b32 s48, s2, 3
    s_and_b32 s49, s48, 1
    s_bfe_u32 s50, s48, 0x10001
    s_lshr_b32 s51, s48, 2
    s_lshl_b32 s52, s47, 1
    s_or_b32 s52, s52, s49
    s_mul_i32 s53, s50, 40
    s_add_u32 s54, s0, s53
    s_addc_u32 s55, s1, 0
    s_load_dwordx2 s[4:5], s[54:55], 0
    s_load_dwordx2 s[8:9], s[54:55], 24
    s_load_dwordx2 s[12:13], s[54:55], 8
    s_load_dwordx2 s[16:17], s[54:55], 16
    s_load_dwordx2 s[20:21], s[54:55], 32
    s_load_dwordx2 s[24:25], s[0:1], 96
    s_getpc_b64 s[40:41]
    L_pc:
    v_lshlrev_b32 v2, 7, v0
    v_min_u32 v2, L_code_end-L_pc-4, v2
    """)
    t.vmem("global_load_dword v3, v2, s[40:41]", "code")
    t.e(f"""
    v_lshrrev_b32 v2, 6, v0
    v_and_b32 v1, 63, v0
    v_readfirstlane_b32 s3, v2
    v_and_b32 v4, 31, v1
    v_lshrrev_b32 v5, 5, v1
    v_and_b32 v6, 15, v1
    v_bfe_u32 v7, v1, 4, 1
    """)
    t.e(f"""
    v_lshl_add_u32 v8, v2, 5, v4
    v_mul_u32_u24 v8, 896, v8
    v_lshl_add_u32 v{vX}, v5, 4, v8
    """)
    t.e(f"""
    v_lshlrev_b32 v8, 2, v5
    v_lshl_add_u32 v8, v2, 3, v8
    v_lshlrev_b32 v9, 4, v4
    v_lshl_add_u32 v{voQ[0]}, v8, 13, v9
    v_add_u32 v{voQ[1]}, 0x2000, v{voQ[0]}
    v_add_u32 v{voQ[2]}, 0x4000, v{voQ[0]}
    v_add_u32 v{voQ[3]}, 0x6000, v{voQ[0]}
    s_mul_i32 s{sWpA}, s3, {4*KS}
    s_mul_i32 s{sWpB}, s3, {4*VS}
    s_mul_i32 s47, s51, 114688
    s_lshl_b32 s48, s52, 9
    s_waitcnt lgkmcnt(0)
    s_add_u32 s4, s4, s47
    s_addc_u32 s5, s5, 0
    s_and_b32 s5, s5, 0xffff
    s_mov_b32 s6, 114688
    s_mov_b32 s7, 0x20000
    s_add_u32 s8, s8, s48
    s_addc_u32 s9, s9, 0
    s_and_b32 s9, s9, 0xffff
    s_sub_u32 s10, {448*8192}, s48
    s_mov_b32 s11, 0x20000
    """)
    wq_slot = {0: slotB(0), 1: slotA(2), 2: slotB(1), 3: slotA(3), 4: slotB(2), 5: slotB(3),
               6: slotA(0), 7: slotA(1), 8: slotB(0), 9: slotA(2), 10: slotB(1), 11: slotA(3), 12: slotB(2), 13: slotB(3)}
    def dma_items(tag, sr, vo, so, sbase, cbase, stride, fl, post=()):
        def m(k): return f"s_add_u32 m0, s{sbase}, {cbase + k*stride}"
        def ld(k): return lambda: t.vmem(f"buffer_load_dwordx4 v{vo[k]}, {srd(sr)}, s{so} offen{fl} lds", tag)
        return [[m(0)], [ld(0), m(1)], [ld(1), m(2)], [ld(2), m(3)], [ld(3)] + list(post)]
    def dma_now(items):
        for g in items:
            t.item(g)
            if g is not items[-1]: t.e("s_nop 0")
    def wq_items(n):
        it = dma_items(f"wq{n}", sWQ, voQ, sTmp, sWpB, wq_slot[n], VS, wnt)
        it[0] = [f"s_mov_b32 s{sTmp}, {n*262144}"] + it[0]
        return it
    def xload(s): t.vmem(f"buffer_load_dwordx4 {ar(aX+4*s,4)}, v{vX}, {srd(sX)}, 0 offen offset:{s*32}{xnt}", f"x{s}")
    for g in range(4):
        for s in range(4*g, 4*g+4): xload(s)
        dma_now(wq_items(2*g)); dma_now(wq_items(2*g+1))
    for s in range(16, 28): xload(s)
    t.e(f"""
    s_lshl_b32 s47, s51, 4
    s_add_u32 s47, s47, s52
    s_sub_u32 s48, 1, s50
    s_lshr_b32 s48, s47, s48
    s_lshl_b32 s48, s48, 18
    s_add_u32 s12, s12, s48
    s_addc_u32 s13, s13, 0
    s_and_b32 s13, s13, 0xffff
    s_mov_b32 s14, 0x40000
    s_mov_b32 s15, 0x20000
    s_add_u32 s16, s16, s48
    s_addc_u32 s17, s17, 0
    s_and_b32 s17, s17, 0xffff
    s_mov_b32 s18, 0x40000
    s_mov_b32 s19, 0x20000
    s_mul_i32 s48, s52, 229376
    s_add_u32 s20, s20, s48
    s_addc_u32 s21, s21, 0
    s_and_b32 s21, s21, 0xffff
    s_mov_b32 s22, 229376
    s_mov_b32 s23, 0x20000
    s_mov_b32 s58, s24
    s_mov_b32 s59, s25
    s_lshl_b32 s48, s50, 7
    s_add_u32 s47, s47, s48
    s_mul_i32 s48, s47, 114688
    s_add_u32 s24, s24, s48
    s_addc_u32 s25, s25, 0
    s_and_b32 s25, s25, 0xffff
    s_mov_b32 s26, 114688
    s_mov_b32 s27, 0x20000
    s_mov_b32 s{soA}, 0
    s_mov_b32 s{soB}, 0
    s_mov_b32 s{inA}, 16384
    s_mov_b32 s{inB}, 16384
    s_mov_b32 s{sThr}, {f2u(65536.0)}
    s_mov_b32 s{sC}, {f2u(math.log2(math.e)/16)}
    s_mov_b32 s{sC+1}, {f2u(math.log2(math.e)/16)}
    s_mov_b32 s{sTog}, {2*PAIR}
    s_mul_i32 s{sSt}, s3, 28672
    s_mov_b32 s{sStP}, 0x7ff00000
    v_lshl_add_u32 v{voA[0]}, v8, 9, v9
    v_add_u32 v{voA[1]}, 512, v{voA[0]}
    v_add_u32 v{voA[2]}, 1024, v{voA[0]}
    v_add_u32 v{voA[3]}, 1536, v{voA[0]}
    v_mov_b32 v{voB[0]}, v{voA[0]}
    v_mov_b32 v{voB[1]}, v{voA[1]}
    v_mov_b32 v{voB[2]}, v{voA[2]}
    v_mov_b32 v{voB[3]}, v{voA[3]}
    v_lshlrev_b32 v{vSt}, 4, v1
    """)
    t.e(f"""
    v_lshrrev_b32 v8, 3, v1
    v_lshl_add_u32 v8, v2, 5, v8
    v_mul_u32_u24 v8, 896, v8
    v_and_b32 v9, 7, v1
    v_lshlrev_b32 v10, 2, v7
    v_xor_b32 v9, v9, v10
    v_lshl_add_u32 v{voW[0]}, v9, 4, v8
    v_add_u32 v{voW[1]}, {8*896}, v{voW[0]}
    v_add_u32 v{voW[2]}, {16*896}, v{voW[0]}
    v_add_u32 v{voW[3]}, {24*896}, v{voW[0]}
    """)
    t.e(f"""
    v_and_b32 v8, 3, v4
    v_lshrrev_b32 v9, 3, v4
    v_lshl_add_u32 v8, v9, 2, v8
    v_mul_u32_u24 v8, {KS}, v8
    v_bfe_u32 v9, v4, 2, 1
    v_lshl_add_u32 v8, v9, 9, v8
    v_lshl_add_u32 v{vK}, v5, 4, v8
    """)
    t.e(f"""
    v_lshrrev_b32 v8, 2, v6
    v_mul_u32_u24 v9, {VS}, v8
    v_lshl_add_u32 v9, v7, 5, v9
    v_and_b32 v10, 3, v6
    v_lshl_add_u32 v11, v10, 3, v9
    v_lshl_add_u32 v11, v5, 9, v11
    v_add_u32 v{vV}, {SLOT}, v11
    v_and_b32 v11, 1, v6
    v_bfe_u32 v12, v6, 1, 1
    v_lshl_add_u32 v10, v11, 1, v12
    v_lshl_add_u32 v11, v10, 3, v9
    v_mul_u32_u24 v12, 4352, v5
    v_add_u32 v{vQ[0]}, v11, v12
    v_add_u32 v{vQ[1]}, {3*SLOT}, v{vQ[0]}
    v_add_u32 v{vQ[2]}, {6*SLOT}, v{vQ[0]}
    v_lshl_add_u32 v8, v5, 2, v8
    v_lshlrev_b32 v8, 7, v8
    v_lshl_add_u32 v8, v7, 5, v8
    v_lshl_add_u32 v8, v10, 3, v8
    v_lshrrev_b32 v9, 3, v6
    v_lshl_add_u32 v{vWo[0]}, v9, 6, v8
    v_xor_b32 v{vWo[1]}, 64, v{vWo[0]}
    """)

    def tr2(addr, o0, o1):
        return lambda f: [f"ds_read_b64_tr_b16 {ar(f,2)}, v{addr} offset:{o0}", f"ds_read_b64_tr_b16 {ar(f+2,2)}, v{addr} offset:{o1}"]
    def b128(addr, o):
        return lambda f: [f"ds_read_b128 {ar(f,4)}, v{addr} offset:{o}"]
    def mf(d, b, c):
        return lambda f: f"v_mfma_f32_32x32x16_bf16 {vr(d,16)}, {ar(f,4)}, {b}, {c}"
    def sync(tag): return [lambda: t.vmwait(tag), "s_barrier"]
    def put(fill, g, items):
        fill.setdefault(g, []).extend(items if isinstance(items, list) else [items])
    def put_dma(fill, items, g0=1, step=1):
        for k, grp in enumerate(items): put(fill, g0 + k * step, grp)

    def kitems(n, sb, cb):
        return dma_items(f"a{n}", sA, voA, soA, sb, cb, KS, kvnt, [f"s_add_u32 s{soA}, s{soA}, s{inA}"])
    def vitems(n, sb, cb):
        return dma_items(f"b{n}", sB, voB, soB, sb, cb, VS, kvnt, [f"s_add_u32 s{soB}, s{soB}, s{inB}"])

    phases = []
    order = [("a",0),("a",1),("b",0),("a",2),("b",1),("a",3),("b",2),("b",3)]
    def kv_static(x):
        k, n = x
        return kitems(n, sWpA, slotA(n)) if k == "a" else vitems(n, sWpB, slotB(n))
    for n in range(14):
        sl = wq_slot[n]; base = vQ[sl // (3*SLOT)]; ob = sl % (3*SLOT)
        m = []
        for ks in range(2):
            for d in range(8):
                c = "0" if (n == 0 and ks == 0) else vr(O+16*d, 16)
                m.append((mf(O+16*d, ar(aX+4*(2*n+ks), 4), c), tr2(base, ob + ks*8704 + d*64, ob + ks*8704 + d*64 + 512)))
        fill = {}
        put(fill, 0, sync(f"wq{n+1}" if n < 13 else "a0"))
        if 1 <= n <= 6: put_dma(fill, wq_items(n + 7), 1, 2)
        if n >= 7: put_dma(fill, kv_static(order[n-7]), 1, 2)
        phases.append(dict(m=m, fill=fill, pre=[]))

    def S_m(buf, ob, first_c):
        return [(mf(S[buf], ar(aQ+4*s, 4), first_c if s == 0 else vr(S[buf], 16)), b128(vK, ob + s*32)) for s in range(16)]
    def PV_m(ob, zero=False):
        m = []
        for s in range(2):
            for d in range(8):
                c = "0" if (zero and s == 0) else vr(O+16*d, 16)
                m.append((mf(O+16*d, vr(P+4*s, 4), c), tr2(vV, ob + 2*s*4352 + d*64, ob + (2*s+1)*4352 + d*64)))
        return m
    N1 = 9
    def sm_exp(buf, r): return f"v_exp_f32 v{E+r}, v{S[buf]+r}"
    def sm_add(buf, r): return f"v_add_f32 v{L[buf]}, v{L[buf] if r else L[1-buf]}, v{E+r}"
    def sm_cvt(r2): return f"v_cvt_pk_bf16_f32 v{P+r2}, v{E+2*r2}, v{E+2*r2+1}"
    def part1(fill, buf, g0=6):
        for r in range(N1):
            put(fill, g0 + r, sm_exp(buf, r))
            if r >= 1: put(fill, g0 + r, sm_add(buf, r-1))
    trams = []
    def check(buf, name):
        trams.append((name, buf))
        return [f"v_cmp_nge_f32 vcc, s{sThr}, v{L[buf]}", f"s_cbranch_vccnz T_{name}", f"B_{name}:"]
    def part2_items(buf):
        it = []
        for r in range(N1, 16):
            g = [sm_exp(buf, r), sm_add(buf, r-1)]
            it.append(g)
        return it
    def part2(fill, buf, name):
        it = part2_items(buf)
        for k, g in enumerate(it): put(fill, 6 + k, g)
        for r2 in range(4): put(fill, 1 + r2, sm_cvt(r2))
        put(fill, 9, sm_cvt(4)); put(fill, 11, sm_cvt(5)); put(fill, 13, [sm_add(buf, 15), sm_cvt(6)]); put(fill, 14, sm_cvt(7))
        put(fill, 15, check(buf, name))

    conv = ["s_nop 7", "s_nop 3", stamp]
    for r in range(0, 128, 8):
        for q in range(4): conv.append(f"v_pk_mul_f32 {vr(O+r+2*q,2)}, {vr(O+r+2*q,2)}, s[{sC}:{sC+1}]")
        for q in range(4): conv.append(f"v_cvt_pk_bf16_f32 v{T[q]}, v{O+r+2*q}, v{O+r+2*q+1}")
        for q in range(4): conv.append(f"v_accvgpr_write_b32 a{aQ+r//2+q}, v{T[q]}")
    conv += ["s_nop 1", stamp]
    fill = {}; put(fill, 0, sync("a1")); put_dma(fill, kv_static(order[7]), 1, 2)
    phases.append(dict(m=S_m(0, 0, "0"), fill=fill, pre=conv))
    pre = ["s_nop 7", "s_nop 3"]
    def rowmax(buf, dst, tmp):
        o = [f"v_max3_f32 v{dst}, v{S[buf]}, v{S[buf]+1}, v{S[buf]+2}"]
        for r in range(3, 15, 2): o.append(f"v_max3_f32 v{dst}, v{dst}, v{S[buf]+r}, v{S[buf]+r+1}")
        o.append(f"v_max_f32 v{dst}, v{dst}, v{S[buf]+15}")
        o += [f"v_mov_b32 v{tmp}, v{dst}", "s_nop 1", f"v_permlane32_swap_b32 v{dst}, v{tmp}", f"v_max_f32 v{dst}, v{dst}, v{tmp}"]
        return o
    pre += rowmax(0, T[0], T[1])
    pre += [f"v_sub_f32 v{NM+r}, 0, v{T[0]}" for r in range(16)]
    pre += [f"v_mov_b32 v{L[1]}, 0", "s_nop 0"]
    fill = {}; put(fill, 0, sync("b0")); put_dma(fill, kitems(4, sWpA, slotA(0)), 1, 1)
    for r in range(16): put(fill, r // 4, f"v_sub_f32 v{S[0]+r}, v{S[0]+r}, v{T[0]}")
    for r in range(16):
        g = 4 + (r * 10) // 16
        put(fill, g, sm_exp(0, r))
        if r >= 1: put(fill, g, sm_add(0, r-1))
        if r >= 2 and r % 2 == 0: put(fill, g, sm_cvt(r//2 - 1))
    put(fill, 14, [sm_add(0, 15), sm_cvt(7)])
    phases.append(dict(m=S_m(1, PAIR, vr(NM, 16)), fill=fill, pre=pre))
    fill = {}; put(fill, 0, sync("a2")); put_dma(fill, kitems(5, sWpA, slotA(1)), 1, 1)
    put(fill, 1, f"v_add_u32 v{vK}, {2*PAIR}, v{vK}")
    put(fill, 2, [f"s_add_u32 s{sLA}, s{sWpA}, {2*PAIR}", f"s_add_u32 s{sLB}, s{sWpB}, {SLOT}", f"s_mov_b32 s{sCnt}, 0"])
    part1(fill, 1)
    phases.append(dict(m=PV_m(0, True), fill=fill, pre=[stamp]))
    for it in range(7):
        j = 2 * it + 1
        fill = {}
        put(fill, 0, [f"s_cmp_ge_u32 s{sCnt}, 5", "s_cbranch_scc1 T_sw", "B_sw:"] + sync(f"b{j}"))
        put_dma(fill, vitems(j+3, sLB, 0), 1, 1); part2(fill, 1, "l1")
        phases.append(dict(m=S_m(0, 0, vr(NM, 16)), fill=fill, pre=[(lambda it=it: t.mark("loop_it", "att", it)), ".p2align 3", "L_att:"]))
        fill = {}; put(fill, 0, sync(f"a{j+2}")); put_dma(fill, kitems(j+5, sLA, 0), 1, 1); part1(fill, 0)
        phases.append(dict(m=PV_m(PAIR), fill=fill, pre=[]))
        fill = {}; put(fill, 0, sync(f"b{j+1}")); put_dma(fill, vitems(j+4, sLB, PAIR), 1, 1); part2(fill, 0, "l0")
        put(fill, 5, [f"v_add_u32 v{vV}, s{sTog}, v{vV}", f"s_add_u32 s{sLB}, s{sLB}, s{sTog}"])
        phases.append(dict(m=S_m(1, PAIR, vr(NM, 16)), fill=fill, pre=[]))
        fill = {}; put(fill, 0, sync(f"a{j+3}" if it < 6 else "b15")); put_dma(fill, kitems(j+6, sLA, PAIR), 1, 1); part1(fill, 1)
        put(fill, 5, [f"v_subrev_u32 v{vK}, s{sTog}, v{vK}", f"s_sub_u32 s{sLA}, s{sLA}, s{sTog}"])
        put(fill, 15, [f"s_sub_u32 s{sTog}, 0, s{sTog}", f"s_add_u32 s{sCnt}, s{sCnt}, 1", f"s_cmp_lt_u32 s{sCnt}, 7", "s_cbranch_scc1 L_att"])
        phases.append(dict(m=PV_m(0), fill=fill, pre=[]))
    dummy1 = S_m(0, 0, "0")

    gidx = [0]
    def run(phases, dummy, first_pre=()):
        ms = []
        for ph in phases:
            for k, m in enumerate(ph["m"]): ms.append((ph, k, m))
        n = len(ms)
        allm = [m for (_, _, m) in ms] + list(dummy)
        g0 = gidx[0]
        def reads(i):
            if i < len(allm):
                for r in allm[i][1](aF + 4 * ((g0 + i) % NF)): t.lds(r, g0 + i)
        for i in range(D): reads(i)
        t.item(list(first_pre))
        for i, (ph, k, m) in enumerate(ms):
            if k == 0: t.item(ph["pre"])
            if i % 2 == 0: t.lgwait(g0 + i + 1, force=True)
            t.e(m[0](aF + 4 * ((g0 + i) % NF)))
            reads(i + D)
            t.item(ph["fill"].get(k, []))
        gidx[0] = g0 + ((n + len(dummy) + NF - 1) // NF) * NF

    t.vmwait("wq0"); t.e("s_barrier"); stamp()
    run(phases, dummy1)
    t.mark("loop_end", "att")
    stamp()
    t.lgall()
    phases = []
    pre = []
    for g in part2_items(1): pre += g
    pre += [sm_cvt(r2) for r2 in range(7)] + [sm_add(1, 15), sm_cvt(7)] + check(1, "fin")
    fill = {}; put(fill, 0, sync("a16")); put_dma(fill, vitems(18, sWpB, slotB(2)), 1, 1)
    put(fill, 6, [f"v_mov_b32 v{T[1]}, v{L[1]}"]); put(fill, 7, [f"v_permlane32_swap_b32 v{L[1]}, v{T[1]}"])
    put(fill, 8, [f"v_add_f32 v{T[0]}, v{L[1]}, v{T[1]}"]); put(fill, 9, [f"v_rcp_f32 v{T[2]}, v{T[0]}"])
    put(fill, 10, [f"v_mov_b32 v{T[3]}, v{T[2]}"])
    put(fill, 11, [f"s_mov_b32 s{sLA}, s{sWpA}", f"s_add_u32 s{sLB}, s{sWpB}, {slotB(3)}", f"s_mov_b32 s{sCnt}, 0"])
    phases.append(dict(m=PV_m(PAIR), fill=fill, pre=[]))
    first_pre = pre
    assert T[2] % 2 == 0
    norm = ["s_nop 7", "s_nop 3", stamp]
    for r in range(0, 128, 8):
        for q in range(4): norm.append(f"v_pk_mul_f32 {vr(O+r+2*q,2)}, {vr(O+r+2*q,2)}, {vr(T[2],2)}")
        for q in range(4): norm.append(f"v_cvt_pk_bf16_f32 v{O+r//2+q}, v{O+r+2*q}, v{O+r+2*q+1}")
    norm += ["s_nop 1", stamp]
    def out_m(par):
        m = []
        st = KS if par == 0 else VS; ob = 0 if par == 0 else SLOT
        for nb in range(2):
            for s in range(8):
                c = "0" if (par == 0 and s == 0) else vr(S[nb], 16)
                m.append((mf(S[nb], vr(O + 4*(8*par+s), 4), c), tr2(vWo[nb], ob + 2*s*st, ob + (2*s+1)*st)))
        return m
    def ocvt(nb, r2): return f"v_cvt_pk_bf16_f32 v{E+8*nb+r2}, v{S[nb]+2*r2}, v{S[nb]+2*r2+1}"
    def ostore(nb, hh, so): return lambda: t.vmem(f"buffer_store_dwordx4 {vr(E+8*nb+4*hh,4)}, v{vSt}, {srd(sP)}, s{so} offen offset:{nb*2048+hh*1024}{stfl}", "st")
    for i in range(7):
        fill = {}
        put(fill, 0, [f"s_cmp_ge_u32 s{sCnt}, 4", f"s_cselect_b32 s{sB+2}, 0, s{sB+2}"] + sync(f"b{16+i}"))
        put_dma(fill, vitems(19+i, sLB, 0), 8, 1)
        for r2 in range(8): put(fill, 3 + r2 // 2, ocvt(1, r2))
        put(fill, 6, ostore(1, 0, sStP)); put(fill, 7, ostore(1, 1, sStP))
        phases.append(dict(m=out_m(0), fill=fill, pre=(norm if i == 0 else []) + [(lambda i=i: t.mark("loop_it", "out", i)), ".p2align 3", "L_out:"]))
        fill = {}
        put(fill, 0, [f"s_cmp_ge_u32 s{sCnt}, 3", f"s_cselect_b32 s{sA+2}, 0, s{sA+2}"] + sync(f"a{17+i}"))
        put_dma(fill, kitems(20+i, sLA, 0), 1, 1)
        put(fill, 6, [f"s_add_u32 s{sCnt}, s{sCnt}, 1", f"s_and_b32 s{sTmp}, s{sCnt}, 3", f"s_cselect_b32 s{sInc}, s47, s48"])
        put(fill, 7, [f"v_add_u32 v{vWo[0]}, s{sInc}, v{vWo[0]}", f"s_add_u32 s{sLB}, s{sLA}, s49", f"s_add_u32 s{sLA}, s{sLA}, s{sInc}"])
        put(fill, 10, [f"v_add_u32 v{vWo[1]}, s{sInc}, v{vWo[1]}"])
        for r2 in range(8): put(fill, 11 + r2 // 2, ocvt(0, r2))
        put(fill, 14, ostore(0, 0, sSt))
        put(fill, 15, [ostore(0, 1, sSt), f"s_mov_b32 s{sStP}, s{sSt}", f"s_add_u32 s{sSt}, s{sSt}, 4096", f"s_cmp_lt_u32 s{sCnt}, 7", "s_cbranch_scc1 L_out"])
        phases.append(dict(m=out_m(1), fill=fill, pre=[]))
    t.e(f"s_mov_b32 s47, {PAIR}\ns_mov_b32 s48, {(-3*PAIR) & 0xffffffff}\ns_sub_u32 s49, s{sWpB}, s{sWpA}\ns_add_u32 s49, s49, {SLOT}")
    run(phases, out_m(0), first_pre)
    t.mark("loop_end", "out")
    t.e("s_nop 7")
    for r2 in range(8): t.e(ocvt(1, r2))
    t.item([ostore(1, 0, sStP), ostore(1, 1, sStP)])
    stamp()
    if stamps:
        t.e("s_waitcnt vmcnt(0)"); stamp()
        t.e("s_memrealtime s[54:55]\ns_waitcnt lgkmcnt(0)")
        t.e(f"""
        s_lshl_b32 s47, s2, 2
        s_add_u32 s47, s47, s3
        s_lshl_b32 s47, s47, 7
        s_add_u32 s47, s47, 0x8000000
        s_add_u32 s58, s58, s47
        s_addc_u32 s59, s59, 0
        v_mov_b32 v2, 0
        s_mov_b64 exec, 1
        """)
        if dbg is not None:
            t.e(f"""
            s_cmp_lg_u32 s2, {dbg}
            s_cbranch_scc1 L_nodbg
            s_cmp_lg_u32 s3, 0
            s_cbranch_scc1 L_nodbg
            s_load_dwordx2 s[48:49], s[0:1], 88
            s_waitcnt lgkmcnt(0)
            s_sub_u32 s47, s54, s56
            v_mov_b32 v4, s47
            global_store_dword v2, v4, s[48:49]
            """)
            for k in range(1, nst[0]):
                t.e(f"s_sub_u32 s47, s{sStamp+2*k}, s{sStamp+2*k-2}\nv_mov_b32 v4, s47\nglobal_store_dword v2, v4, s[48:49] offset:{4*k}")
            t.e("L_nodbg:")
        regs = [56, 54] + [sStamp + 2*k for k in range(nst[0])]
        assert len(regs) <= 16
        for k, r in enumerate(regs):
            t.e(f"v_mov_b32 v4, s{r}\nv_mov_b32 v5, s{r+1}\nglobal_store_dwordx2 v2, v[4:5], s[58:59] offset:{8*k}\ns_nop 1")
    t.e("L_end:\ns_endpgm")
    main_lin_end = len(t.tr)
    t.e(f"""
    T_sw:
    s_cmp_eq_u32 s{sCnt}, 6
    s_cbranch_scc1 T_sw2
    s_mov_b32 s{sA}, s{sWO}
    s_mov_b32 s{sA+1}, s{sWO+1}
    s_mov_b32 s{sA+2}, s{sWO+2}
    s_mov_b32 s{soA}, 0
    s_mov_b32 s{inA}, 128
    """ + "\n".join(f"v_mov_b32 v{voA[k]}, v{voW[k]}" for k in range(4)) + f"""
    s_branch B_sw
    T_sw2:
    s_mov_b32 s{sB}, s{sWO}
    s_mov_b32 s{sB+1}, s{sWO+1}
    s_mov_b32 s{sB+2}, s{sWO+2}
    s_mov_b32 s{soB}, 114688
    s_mov_b32 s{inB}, 128
    """ + "\n".join(f"v_mov_b32 v{voB[k]}, v{voW[k]}" for k in range(4)) + """
    s_branch B_sw
    """)
    seen = set()
    for name, buf in trams:
        if name in seen: continue
        seen.add(name)
        t.e(f"T_{name}:\ns_call_b64 s[{sRet}:{sRet+1}], R_{buf}\ns_branch B_{name}")
    for buf in range(2):
        t.e(f"R_{buf}:\ns_nop 15")
        t.e("\n".join(rowmax(buf, T[0], T[1])))
        t.e(f"v_max_f32 v{T[0]}, 0, v{T[0]}\nv_exp_f32 v{T[2]}, -v{T[0]}")
        for r in range(16): t.e(f"v_sub_f32 v{NM+r}, v{NM+r}, v{T[0]}")
        for r in range(16): t.e(f"v_sub_f32 v{S[1-buf]+r}, v{S[1-buf]+r}, v{T[0]}")
        for r in range(16): t.e(f"v_sub_f32 v{S[buf]+r}, v{S[buf]+r}, v{T[0]}")
        for r in range(16): t.e(sm_exp(buf, r))
        t.e(f"v_mul_f32 v{L[1-buf]}, v{L[1-buf]}, v{T[2]}")
        for r in range(16): t.e(sm_add(buf, r))
        for r2 in range(8): t.e(sm_cvt(r2))
        for r in range(128): t.e(f"v_mul_f32 v{O+r}, v{O+r}, v{T[2]}")
        t.e(f"s_nop 1\ns_setpc_b64 s[{sRet}:{sRet+1}]")
    lines, lin = t.fold()
    errs = check_hazards(lin)
    k1 = "\n".join(lines) + "\n"

    r = Trace()
    r.e(f"""
    s_cmp_ge_u32 s2, 448
    s_cbranch_scc1 L_end2
    s_load_dwordx2 s[4:5], s[0:1], 96
    s_load_dwordx2 s[8:9], s[0:1], 80
    s_mul_i32 s12, s2, {(65536 + 27)//28}
    s_lshr_b32 s12, s12, 16
    s_mul_i32 s13, s12, 28
    s_sub_u32 s13, s2, s13
    s_mul_i32 s14, s13, {(65536 + 6)//7}
    s_lshr_b32 s14, s14, 16
    s_mul_i32 s15, s14, 7
    s_sub_u32 s15, s13, s15
    s_mul_i32 s16, s12, {16*114688}
    s_lshl_b32 s17, s13, 12
    s_add_u32 s16, s16, s17
    v_lshlrev_b32 v1, 4, v0
    s_waitcnt lgkmcnt(0)
    s_and_b32 s5, s5, 0xffff
    s_mov_b32 s6, {256*114688}
    s_mov_b32 s7, 0x20000
    """)
    for k in range(16):
        r.vmem(f"buffer_load_dwordx4 {vr(16+4*k,4)}, v1, s[4:7], s16 offen{rdfl}", f"p{k}")
        if k < 15: r.e("s_add_u32 s16, s16, 114688")
    r.e(f"""
    s_and_b32 s9, s9, 0xffff
    s_mov_b32 s10, {8*128*896*2}
    s_mov_b32 s11, 0x20000
    s_and_b32 s18, s12, 7
    s_lshr_b32 s19, s12, 3
    s_lshl_b32 s18, s18, 7
    s_lshl_b32 s20, s14, 5
    s_add_u32 s18, s18, s20
    s_mul_i32 s18, s18, 1792
    s_mul_i32 s19, s19, 896
    s_add_u32 s18, s18, s19
    s_lshl_b32 s20, s15, 7
    s_add_u32 s18, s18, s20
    v_and_b32 v2, 31, v0
    v_mul_u32_u24 v2, 1792, v2
    v_lshrrev_b32 v3, 5, v0
    v_lshl_add_u32 v2, v3, 4, v2
    """)
    for k in range(16):
        r.vmwait(f"p{k}")
        for q in range(4):
            src = 16 + 4*k + q
            if k == 0:
                r.e(f"v_lshlrev_b32 v{4+2*q}, 16, v{src}\nv_and_b32 v{5+2*q}, 0xffff0000, v{src}")
            else:
                r.e(f"v_lshlrev_b32 v12, 16, v{src}\nv_and_b32 v13, 0xffff0000, v{src}\nv_pk_add_f32 {vr(4+2*q,2)}, {vr(4+2*q,2)}, v[12:13]")
    for q in range(4): r.e(f"v_cvt_pk_bf16_f32 v{16+q}, v{4+2*q}, v{5+2*q}")
    r.e("buffer_store_dwordx4 v[16:19], v2, s[8:11], s18 offen\nL_end2:")
    lines2, lin2 = r.fold()
    errs += check_hazards(lin2)
    k2 = "\n".join(lines2) + "\n"
    txt = file_wrap([f"; @launch kernel=attn_kernel grid=(256,1,1) block=(256,1,1) lds={8*SLOT}",
                     f"; @launch kernel=red_kernel grid=(448,1,1) block=(256,1,1) lds=0"],
                    [("attn_kernel", k1, 464, 256, 96), ("red_kernel", k2, 80, 80, 32)])
    txt = txt.replace('.section .rodata,"a"', 'L_code_end:\n.section .rodata,"a"')
    assert not errs
    return txt

if __name__ == "__main__":
    open("v1.s", "w").write(gen())
    open("v1_st.s", "w").write(gen(stamps=True))
    open("v1_dbg.s", "w").write(gen(stamps=True, dbg=17))
```

```python
import sys, struct, math
from fw import *
from asmlib import NAME, file_wrap

SLOT = 17408; KS = 1040; VS = 1088; PAIR = 2 * SLOT
def slotA(n): return (n % 4) * PAIR
def slotB(n): return (n % 4) * PAIR + SLOT
def f2u(x): return struct.unpack("<I", struct.pack("<f", x))[0]

vK, vV = 16, 17
vQ = [18, 19, 20]
vWo = [21, 22]
vSt = 23
voA = [24, 25, 26, 27]; voB = [28, 29, 30, 31]; voW = [32, 33, 34, 35]; vX = 36
T = list(range(40, 54))
L = [54, 55]; P = 56; E = 64; NM = 80; S = [96, 112]; O = 128
voQ = [96, 97, 98, 99]
aX = 0; aF = 112; aQ = 144
NF = 8
sX, sWQ, sA, sB, sWO, sP = 4, 8, 12, 16, 20, 24
soA, soB, inA, inB, sLA, sLB, sCnt, sThr = 28, 29, 30, 31, 32, 33, 34, 35
sC = 36
sWpA, sWpB, sTog, sSt, sStP, sTmp, sInc = 38, 39, 42, 43, 44, 45, 46
sRet = 40
sStamp = 60

def vr(b, n): return f"v[{b}:{b+n-1}]"
def ar(b, n): return f"a[{b}:{b+n-1}]"
def srd(b): return f"s[{b}:{b+3}]"

def gen(D=6, stamps=False, dbg=None, kvnt=" nt", wnt="", xnt="", stfl=" sc1", rdfl=" nt"):
    t = Trace()
    nst = [0]
    def stamp():
        if stamps:
            t.e(f"s_memtime s[{sStamp+2*nst[0]}:{sStamp+2*nst[0]+1}]"); nst[0] += 1
    t.e("s_cmp_ge_u32 s2, 256\ns_cbranch_scc1 L_end")
    if stamps: t.e("s_memrealtime s[56:57]")
    stamp()
    t.e(f"""
    s_and_b32 s47, s2, 7
    s_lshr_b32 s48, s2, 3
    s_and_b32 s49, s48, 1
    s_bfe_u32 s50, s48, 0x10001
    s_lshr_b32 s51, s48, 2
    s_lshl_b32 s52, s47, 1
    s_or_b32 s52, s52, s49
    s_mul_i32 s53, s50, 40
    s_add_u32 s54, s0, s53
    s_addc_u32 s55, s1, 0
    s_load_dwordx2 s[4:5], s[54:55], 0
    s_load_dwordx2 s[8:9], s[54:55], 24
    s_load_dwordx2 s[12:13], s[54:55], 8
    s_load_dwordx2 s[16:17], s[54:55], 16
    s_load_dwordx2 s[20:21], s[54:55], 32
    s_load_dwordx2 s[24:25], s[0:1], 96
    s_getpc_b64 s[40:41]
    L_pc:
    v_lshlrev_b32 v2, 7, v0
    v_min_u32 v2, L_code_end-L_pc-4, v2
    """)
    t.vmem("global_load_dword v3, v2, s[40:41]", "code")
    t.e(f"""
    v_lshrrev_b32 v2, 6, v0
    v_and_b32 v1, 63, v0
    v_readfirstlane_b32 s3, v2
    v_and_b32 v4, 31, v1
    v_lshrrev_b32 v5, 5, v1
    v_and_b32 v6, 15, v1
    v_bfe_u32 v7, v1, 4, 1
    """)
    t.e(f"""
    v_lshl_add_u32 v8, v2, 5, v4
    v_mul_u32_u24 v8, 896, v8
    v_lshl_add_u32 v{vX}, v5, 4, v8
    """)
    t.e(f"""
    v_lshlrev_b32 v8, 2, v5
    v_lshl_add_u32 v8, v2, 3, v8
    v_lshlrev_b32 v9, 4, v4
    v_lshl_add_u32 v{voQ[0]}, v8, 13, v9
    v_add_u32 v{voQ[1]}, 0x2000, v{voQ[0]}
    v_add_u32 v{voQ[2]}, 0x4000, v{voQ[0]}
    v_add_u32 v{voQ[3]}, 0x6000, v{voQ[0]}
    s_mul_i32 s{sWpA}, s3, {4*KS}
    s_mul_i32 s{sWpB}, s3, {4*VS}
    s_mul_i32 s47, s51, 114688
    s_lshl_b32 s48, s52, 9
    s_waitcnt lgkmcnt(0)
    s_add_u32 s4, s4, s47
    s_addc_u32 s5, s5, 0
    s_and_b32 s5, s5, 0xffff
    s_mov_b32 s6, 114688
    s_mov_b32 s7, 0x20000
    s_add_u32 s8, s8, s48
    s_addc_u32 s9, s9, 0
    s_and_b32 s9, s9, 0xffff
    s_sub_u32 s10, {448*8192}, s48
    s_mov_b32 s11, 0x20000
    """)
    wq_slot = {0: slotB(0), 1: slotA(2), 2: slotB(1), 3: slotA(3), 4: slotB(2), 5: slotB(3),
               6: slotA(0), 7: slotA(1), 8: slotB(0), 9: slotA(2), 10: slotB(1), 11: slotA(3), 12: slotB(2), 13: slotB(3)}
    def dma_items(tag, sr, vo, so, sbase, cbase, stride, fl, post=()):
        def m(k): return f"s_add_u32 m0, s{sbase}, {cbase + k*stride}"
        def ld(k): return lambda: t.vmem(f"buffer_load_dwordx4 v{vo[k]}, {srd(sr)}, s{so} offen{fl} lds", tag)
        return [[m(0)], [ld(0), m(1)], [ld(1), m(2)], [ld(2), m(3)], [ld(3)] + list(post)]
    def dma_now(items):
        for g in items:
            t.item(g)
            if g is not items[-1]: t.e("s_nop 0")
    def wq_items(n):
        it = dma_items(f"wq{n}", sWQ, voQ, sTmp, sWpB, wq_slot[n], VS, wnt)
        it[0] = [f"s_mov_b32 s{sTmp}, {n*262144}"] + it[0]
        return it
    def xload(s): t.vmem(f"buffer_load_dwordx4 {ar(aX+4*s,4)}, v{vX}, {srd(sX)}, 0 offen offset:{s*32}{xnt}", f"x{s}")
    for g in range(4):
        for s in range(4*g, 4*g+4): xload(s)
        dma_now(wq_items(2*g)); dma_now(wq_items(2*g+1))
    for s in range(16, 28): xload(s)
    t.e(f"""
    s_lshl_b32 s47, s51, 4
    s_add_u32 s47, s47, s52
    s_sub_u32 s48, 1, s50
    s_lshr_b32 s48, s47, s48
    s_lshl_b32 s48, s48, 18
    s_add_u32 s12, s12, s48
    s_addc_u32 s13, s13, 0
    s_and_b32 s13, s13, 0xffff
    s_mov_b32 s14, 0x40000
    s_mov_b32 s15, 0x20000
    s_add_u32 s16, s16, s48
    s_addc_u32 s17, s17, 0
    s_and_b32 s17, s17, 0xffff
    s_mov_b32 s18, 0x40000
    s_mov_b32 s19, 0x20000
    s_mul_i32 s48, s52, 229376
    s_add_u32 s20, s20, s48
    s_addc_u32 s21, s21, 0
    s_and_b32 s21, s21, 0xffff
    s_mov_b32 s22, 229376
    s_mov_b32 s23, 0x20000
    s_mov_b32 s58, s24
    s_mov_b32 s59, s25
    s_lshl_b32 s48, s50, 7
    s_add_u32 s47, s47, s48
    s_mul_i32 s48, s47, 114688
    s_add_u32 s24, s24, s48
    s_addc_u32 s25, s25, 0
    s_and_b32 s25, s25, 0xffff
    s_mov_b32 s26, 114688
    s_mov_b32 s27, 0x20000
    s_mov_b32 s{soA}, 0
    s_mov_b32 s{soB}, 0
    s_mov_b32 s{inA}, 16384
    s_mov_b32 s{inB}, 16384
    s_mov_b32 s{sThr}, {f2u(65536.0)}
    s_mov_b32 s{sC}, {f2u(math.log2(math.e)/16)}
    s_mov_b32 s{sC+1}, {f2u(math.log2(math.e)/16)}
    s_mov_b32 s{sTog}, {2*PAIR}
    s_mul_i32 s{sSt}, s3, 28672
    s_mov_b32 s{sStP}, 0x7ff00000
    v_lshl_add_u32 v{voA[0]}, v8, 9, v9
    v_add_u32 v{voA[1]}, 512, v{voA[0]}
    v_add_u32 v{voA[2]}, 1024, v{voA[0]}
    v_add_u32 v{voA[3]}, 1536, v{voA[0]}
    v_mov_b32 v{voB[0]}, v{voA[0]}
    v_mov_b32 v{voB[1]}, v{voA[1]}
    v_mov_b32 v{voB[2]}, v{voA[2]}
    v_mov_b32 v{voB[3]}, v{voA[3]}
    v_lshlrev_b32 v{vSt}, 4, v1
    """)
    t.e(f"""
    v_lshrrev_b32 v8, 3, v1
    v_lshl_add_u32 v8, v2, 5, v8
    v_mul_u32_u24 v8, 896, v8
    v_and_b32 v9, 7, v1
    v_lshlrev_b32 v10, 2, v7
    v_xor_b32 v9, v9, v10
    v_lshl_add_u32 v{voW[0]}, v9, 4, v8
    v_add_u32 v{voW[1]}, {8*896}, v{voW[0]}
    v_add_u32 v{voW[2]}, {16*896}, v{voW[0]}
    v_add_u32 v{voW[3]}, {24*896}, v{voW[0]}
    """)
    t.e(f"""
    v_and_b32 v8, 3, v4
    v_lshrrev_b32 v9, 3, v4
    v_lshl_add_u32 v8, v9, 2, v8
    v_mul_u32_u24 v8, {KS}, v8
    v_bfe_u32 v9, v4, 2, 1
    v_lshl_add_u32 v8, v9, 9, v8
    v_lshl_add_u32 v{vK}, v5, 4, v8
    """)
    t.e(f"""
    v_lshrrev_b32 v8, 2, v6
    v_mul_u32_u24 v9, {VS}, v8
    v_lshl_add_u32 v9, v7, 5, v9
    v_and_b32 v10, 3, v6
    v_lshl_add_u32 v11, v10, 3, v9
    v_lshl_add_u32 v11, v5, 9, v11
    v_add_u32 v{vV}, {SLOT}, v11
    v_and_b32 v11, 1, v6
    v_bfe_u32 v12, v6, 1, 1
    v_lshl_add_u32 v10, v11, 1, v12
    v_lshl_add_u32 v11, v10, 3, v9
    v_mul_u32_u24 v12, 4352, v5
    v_add_u32 v{vQ[0]}, v11, v12
    v_add_u32 v{vQ[1]}, {3*SLOT}, v{vQ[0]}
    v_add_u32 v{vQ[2]}, {6*SLOT}, v{vQ[0]}
    v_lshl_add_u32 v8, v5, 2, v8
    v_lshlrev_b32 v8, 7, v8
    v_lshl_add_u32 v8, v7, 5, v8
    v_lshl_add_u32 v8, v10, 3, v8
    v_lshrrev_b32 v9, 3, v6
    v_lshl_add_u32 v{vWo[0]}, v9, 6, v8
    v_xor_b32 v{vWo[1]}, 64, v{vWo[0]}
    """)

    def tr2(addr, o0, o1):
        return lambda f: [f"ds_read_b64_tr_b16 {ar(f,2)}, v{addr} offset:{o0}", f"ds_read_b64_tr_b16 {ar(f+2,2)}, v{addr} offset:{o1}"]
    def b128(addr, o):
        return lambda f: [f"ds_read_b128 {ar(f,4)}, v{addr} offset:{o}"]
    def mf(d, b, c):
        return lambda f: f"v_mfma_f32_32x32x16_bf16 {vr(d,16)}, {ar(f,4)}, {b}, {c}"
    def sync(tag): return [lambda: t.vmwait(tag), "s_barrier"]
    def put(fill, g, items):
        fill.setdefault(g, []).extend(items if isinstance(items, list) else [items])
    def put_dma(fill, items, g0=1, step=1):
        for k, grp in enumerate(items): put(fill, g0 + k * step, grp)

    def kitems(n, sb, cb):
        return dma_items(f"a{n}", sA, voA, soA, sb, cb, KS, kvnt, [f"s_add_u32 s{soA}, s{soA}, s{inA}"])
    def vitems(n, sb, cb):
        return dma_items(f"b{n}", sB, voB, soB, sb, cb, VS, kvnt, [f"s_add_u32 s{soB}, s{soB}, s{inB}"])

    phases = []
    order = [("a",0),("a",1),("b",0),("a",2),("b",1),("a",3),("b",2),("b",3)]
    def kv_static(x):
        k, n = x
        return kitems(n, sWpA, slotA(n)) if k == "a" else vitems(n, sWpB, slotB(n))
    for n in range(14):
        sl = wq_slot[n]; base = vQ[sl // (3*SLOT)]; ob = sl % (3*SLOT)
        m = []
        for ks in range(2):
            for d in range(8):
                c = "0" if (n == 0 and ks == 0) else vr(O+16*d, 16)
                m.append((mf(O+16*d, ar(aX+4*(2*n+ks), 4), c), tr2(base, ob + ks*8704 + d*64, ob + ks*8704 + d*64 + 512)))
        fill = {}
        put(fill, 0, sync(f"wq{n+1}" if n < 13 else "a0"))
        if 1 <= n <= 6: put_dma(fill, wq_items(n + 7), 1, 2)
        if n >= 7: put_dma(fill, kv_static(order[n-7]), 1, 2)
        phases.append(dict(m=m, fill=fill, pre=[]))

    def S_m(buf, ob, first_c):
        return [(mf(S[buf], ar(aQ+4*s, 4), first_c if s == 0 else vr(S[buf], 16)), b128(vK, ob + s*32)) for s in range(16)]
    def PV_m(ob, zero=False):
        m = []
        for s in range(2):
            for d in range(8):
                c = "0" if (zero and s == 0) else vr(O+16*d, 16)
                m.append((mf(O+16*d, vr(P+4*s, 4), c), tr2(vV, ob + 2*s*4352 + d*64, ob + (2*s+1)*4352 + d*64)))
        return m
    N1 = 9
    def sm_exp(buf, r): return f"v_exp_f32 v{E+r}, v{S[buf]+r}"
    def sm_add(buf, r): return f"v_add_f32 v{L[buf]}, v{L[buf] if r else L[1-buf]}, v{E+r}"
    def sm_cvt(r2): return f"v_cvt_pk_bf16_f32 v{P+r2}, v{E+2*r2}, v{E+2*r2+1}"
    def part1(fill, buf, g0=6):
        for r in range(N1):
            put(fill, g0 + r, sm_exp(buf, r))
            if r >= 1: put(fill, g0 + r, sm_add(buf, r-1))
    trams = []
    def check(buf, name):
        trams.append((name, buf))
        return [f"v_cmp_nge_f32 vcc, s{sThr}, v{L[buf]}", f"s_cbranch_vccnz T_{name}", f"B_{name}:"]
    def part2_items(buf):
        it = []
        for r in range(N1, 16):
            g = [sm_exp(buf, r), sm_add(buf, r-1)]
            it.append(g)
        return it
    def part2(fill, buf, name):
        it = part2_items(buf)
        for k, g in enumerate(it): put(fill, 6 + k, g)
        for r2 in range(4): put(fill, 1 + r2, sm_cvt(r2))
        put(fill, 9, sm_cvt(4)); put(fill, 11, sm_cvt(5)); put(fill, 13, [sm_add(buf, 15), sm_cvt(6)]); put(fill, 14, sm_cvt(7))
        put(fill, 15, check(buf, name))

    conv = ["s_nop 7", "s_nop 3", stamp]
    for r in range(0, 128, 8):
        for q in range(4): conv.append(f"v_pk_mul_f32 {vr(O+r+2*q,2)}, {vr(O+r+2*q,2)}, s[{sC}:{sC+1}]")
        for q in range(4): conv.append(f"v_cvt_pk_bf16_f32 v{T[q]}, v{O+r+2*q}, v{O+r+2*q+1}")
        for q in range(4): conv.append(f"v_accvgpr_write_b32 a{aQ+r//2+q}, v{T[q]}")
    conv += ["s_nop 1", stamp]
    fill = {}; put(fill, 0, sync("a1")); put_dma(fill, kv_static(order[7]), 1, 2)
    phases.append(dict(m=S_m(0, 0, "0"), fill=fill, pre=conv))
    pre = ["s_nop 7", "s_nop 3"]
    def rowmax(buf, dst, tmp):
        o = [f"v_max3_f32 v{dst}, v{S[buf]}, v{S[buf]+1}, v{S[buf]+2}"]
        for r in range(3, 15, 2): o.append(f"v_max3_f32 v{dst}, v{dst}, v{S[buf]+r}, v{S[buf]+r+1}")
        o.append(f"v_max_f32 v{dst}, v{dst}, v{S[buf]+15}")
        o += [f"v_mov_b32 v{tmp}, v{dst}", "s_nop 1", f"v_permlane32_swap_b32 v{dst}, v{tmp}", f"v_max_f32 v{dst}, v{dst}, v{tmp}"]
        return o
    pre += rowmax(0, T[0], T[1])
    pre += [f"v_sub_f32 v{NM+r}, 0, v{T[0]}" for r in range(16)]
    pre += [f"v_mov_b32 v{L[1]}, 0", "s_nop 0"]
    fill = {}; put(fill, 0, sync("b0")); put_dma(fill, kitems(4, sWpA, slotA(0)), 1, 1)
    for r in range(16): put(fill, r // 4, f"v_sub_f32 v{S[0]+r}, v{S[0]+r}, v{T[0]}")
    for r in range(16):
        g = 4 + (r * 10) // 16
        put(fill, g, sm_exp(0, r))
        if r >= 1: put(fill, g, sm_add(0, r-1))
        if r >= 2 and r % 2 == 0: put(fill, g, sm_cvt(r//2 - 1))
    put(fill, 14, [sm_add(0, 15), sm_cvt(7)])
    phases.append(dict(m=S_m(1, PAIR, vr(NM, 16)), fill=fill, pre=pre))
    fill = {}; put(fill, 0, sync("a2")); put_dma(fill, kitems(5, sWpA, slotA(1)), 1, 1)
    put(fill, 1, f"v_add_u32 v{vK}, {2*PAIR}, v{vK}")
    put(fill, 2, [f"s_add_u32 s{sLA}, s{sWpA}, {2*PAIR}", f"s_add_u32 s{sLB}, s{sWpB}, {SLOT}", f"s_mov_b32 s{sCnt}, 0"])
    part1(fill, 1)
    phases.append(dict(m=PV_m(0, True), fill=fill, pre=[stamp]))
    for it in range(7):
        j = 2 * it + 1
        fill = {}
        put(fill, 0, [f"s_cmp_ge_u32 s{sCnt}, 5", "s_cbranch_scc1 T_sw", "B_sw:"] + sync(f"b{j}"))
        put_dma(fill, vitems(j+3, sLB, 0), 1, 1); part2(fill, 1, "l1")
        phases.append(dict(m=S_m(0, 0, vr(NM, 16)), fill=fill, pre=[(lambda it=it: t.mark("loop_it", "att", it)), ".p2align 3", "L_att:"]))
        fill = {}; put(fill, 0, sync(f"a{j+2}")); put_dma(fill, kitems(j+5, sLA, 0), 1, 1); part1(fill, 0)
        phases.append(dict(m=PV_m(PAIR), fill=fill, pre=[]))
        fill = {}; put(fill, 0, sync(f"b{j+1}")); put_dma(fill, vitems(j+4, sLB, PAIR), 1, 1); part2(fill, 0, "l0")
        put(fill, 5, [f"v_add_u32 v{vV}, s{sTog}, v{vV}", f"s_add_u32 s{sLB}, s{sLB}, s{sTog}"])
        phases.append(dict(m=S_m(1, PAIR, vr(NM, 16)), fill=fill, pre=[]))
        fill = {}; put(fill, 0, sync(f"a{j+3}" if it < 6 else "b15")); put_dma(fill, kitems(j+6, sLA, PAIR), 1, 1); part1(fill, 1)
        put(fill, 5, [f"v_subrev_u32 v{vK}, s{sTog}, v{vK}", f"s_sub_u32 s{sLA}, s{sLA}, s{sTog}"])
        put(fill, 15, [f"s_sub_u32 s{sTog}, 0, s{sTog}", f"s_add_u32 s{sCnt}, s{sCnt}, 1", f"s_cmp_lt_u32 s{sCnt}, 7", "s_cbranch_scc1 L_att"])
        phases.append(dict(m=PV_m(0), fill=fill, pre=[]))
    dummy1 = S_m(0, 0, "0")

    gidx = [0]
    def run(phases, dummy, first_pre=()):
        ms = []
        for ph in phases:
            for k, m in enumerate(ph["m"]): ms.append((ph, k, m))
        n = len(ms)
        allm = [m for (_, _, m) in ms] + list(dummy)
        g0 = gidx[0]
        def reads(i):
            if i < len(allm):
                for r in allm[i][1](aF + 4 * ((g0 + i) % NF)): t.lds(r, g0 + i)
        for i in range(D): reads(i)
        t.item(list(first_pre))
        for i, (ph, k, m) in enumerate(ms):
            if k == 0: t.item(ph["pre"])
            if i % 2 == 0: t.lgwait(g0 + i + 1, force=True)
            t.e(m[0](aF + 4 * ((g0 + i) % NF)))
            reads(i + D)
            t.item(ph["fill"].get(k, []))
        gidx[0] = g0 + ((n + len(dummy) + NF - 1) // NF) * NF

    t.vmwait("wq0"); t.e("s_barrier"); stamp()
    run(phases, dummy1)
    t.mark("loop_end", "att")
    stamp()
    t.lgall()
    phases = []
    pre = []
    for g in part2_items(1): pre += g
    pre += [sm_cvt(r2) for r2 in range(7)] + [sm_add(1, 15), sm_cvt(7)] + check(1, "fin")
    fill = {}; put(fill, 0, sync("a16")); put_dma(fill, vitems(18, sWpB, slotB(2)), 1, 1)
    put(fill, 6, [f"v_mov_b32 v{T[1]}, v{L[1]}"]); put(fill, 7, [f"v_permlane32_swap_b32 v{L[1]}, v{T[1]}"])
    put(fill, 8, [f"v_add_f32 v{T[0]}, v{L[1]}, v{T[1]}"]); put(fill, 9, [f"v_rcp_f32 v{T[2]}, v{T[0]}"])
    put(fill, 10, [f"v_mov_b32 v{T[3]}, v{T[2]}"])
    put(fill, 11, [f"s_mov_b32 s{sLA}, s{sWpA}", f"s_add_u32 s{sLB}, s{sWpB}, {slotB(3)}", f"s_mov_b32 s{sCnt}, 0"])
    phases.append(dict(m=PV_m(PAIR), fill=fill, pre=[]))
    first_pre = pre
    assert T[2] % 2 == 0
    norm = ["s_nop 7", "s_nop 3", stamp]
    for r in range(0, 128, 8):
        for q in range(4): norm.append(f"v_pk_mul_f32 {vr(O+r+2*q,2)}, {vr(O+r+2*q,2)}, {vr(T[2],2)}")
        for q in range(4): norm.append(f"v_cvt_pk_bf16_f32 v{O+r//2+q}, v{O+r+2*q}, v{O+r+2*q+1}")
    norm += ["s_nop 1", stamp]
    def out_m(par):
        m = []
        st = KS if par == 0 else VS; ob = 0 if par == 0 else SLOT
        for nb in range(2):
            for s in range(8):
                c = "0" if (par == 0 and s == 0) else vr(S[nb], 16)
                m.append((mf(S[nb], vr(O + 4*(8*par+s), 4), c), tr2(vWo[nb], ob + 2*s*st, ob + (2*s+1)*st)))
        return m
    def ocvt(nb, r2): return f"v_cvt_pk_bf16_f32 v{E+8*nb+r2}, v{S[nb]+2*r2}, v{S[nb]+2*r2+1}"
    def ostore(nb, hh, so): return lambda: t.vmem(f"buffer_store_dwordx4 {vr(E+8*nb+4*hh,4)}, v{vSt}, {srd(sP)}, s{so} offen offset:{nb*2048+hh*1024}{stfl}", "st")
    for i in range(7):
        fill = {}
        put(fill, 0, [f"s_cmp_ge_u32 s{sCnt}, 4", f"s_cselect_b32 s{sB+2}, 0, s{sB+2}"] + sync(f"b{16+i}"))
        put_dma(fill, vitems(19+i, sLB, 0), 8, 1)
        for r2 in range(8): put(fill, 3 + r2 // 2, ocvt(1, r2))
        put(fill, 6, ostore(1, 0, sStP)); put(fill, 7, ostore(1, 1, sStP))
        phases.append(dict(m=out_m(0), fill=fill, pre=(norm if i == 0 else []) + [(lambda i=i: t.mark("loop_it", "out", i)), ".p2align 3", "L_out:"]))
        fill = {}
        put(fill, 0, [f"s_cmp_ge_u32 s{sCnt}, 3", f"s_cselect_b32 s{sA+2}, 0, s{sA+2}"] + sync(f"a{17+i}"))
        put_dma(fill, kitems(20+i, sLA, 0), 1, 1)
        put(fill, 6, [f"s_add_u32 s{sCnt}, s{sCnt}, 1", f"s_and_b32 s{sTmp}, s{sCnt}, 3", f"s_cselect_b32 s{sInc}, s47, s48"])
        put(fill, 7, [f"v_add_u32 v{vWo[0]}, s{sInc}, v{vWo[0]}", f"s_add_u32 s{sLB}, s{sLA}, s49", f"s_add_u32 s{sLA}, s{sLA}, s{sInc}"])
        put(fill, 10, [f"v_add_u32 v{vWo[1]}, s{sInc}, v{vWo[1]}"])
        for r2 in range(8): put(fill, 11 + r2 // 2, ocvt(0, r2))
        put(fill, 14, ostore(0, 0, sSt))
        put(fill, 15, [ostore(0, 1, sSt), f"s_mov_b32 s{sStP}, s{sSt}", f"s_add_u32 s{sSt}, s{sSt}, 4096", f"s_cmp_lt_u32 s{sCnt}, 7", "s_cbranch_scc1 L_out"])
        phases.append(dict(m=out_m(1), fill=fill, pre=[]))
    t.e(f"s_mov_b32 s47, {PAIR}\ns_mov_b32 s48, {(-3*PAIR) & 0xffffffff}\ns_sub_u32 s49, s{sWpB}, s{sWpA}\ns_add_u32 s49, s49, {SLOT}")
    run(phases, out_m(0), first_pre)
    t.mark("loop_end", "out")
    t.e("s_nop 7")
    for r2 in range(8): t.e(ocvt(1, r2))
    t.item([ostore(1, 0, sStP), ostore(1, 1, sStP)])
    stamp()
    if stamps:
        t.e("s_waitcnt vmcnt(0)"); stamp()
        t.e("s_memrealtime s[54:55]\ns_waitcnt lgkmcnt(0)")
        t.e(f"""
        s_lshl_b32 s47, s2, 2
        s_add_u32 s47, s47, s3
        s_lshl_b32 s47, s47, 7
        s_add_u32 s47, s47, 0x8000000
        s_add_u32 s58, s58, s47
        s_addc_u32 s59, s59, 0
        v_mov_b32 v2, 0
        s_mov_b64 exec, 1
        """)
        if dbg is not None:
            t.e(f"""
            s_cmp_lg_u32 s2, {dbg}
            s_cbranch_scc1 L_nodbg
            s_cmp_lg_u32 s3, 0
            s_cbranch_scc1 L_nodbg
            s_load_dwordx2 s[48:49], s[0:1], 96
            s_waitcnt lgkmcnt(0)
            s_add_u32 s48, s48, 0x9000000
            s_addc_u32 s49, s49, 0
            v_mov_b32 v4, s56
            global_store_dword v2, v4, s[48:49] offset:60
            s_sub_u32 s47, s54, s56
            v_mov_b32 v4, s47
            global_store_dword v2, v4, s[48:49]
            """)
            for k in range(1, nst[0]):
                t.e(f"s_sub_u32 s47, s{sStamp+2*k}, s{sStamp+2*k-2}\nv_mov_b32 v4, s47\nglobal_store_dword v2, v4, s[48:49] offset:{4*k}")
            t.e("L_nodbg:")
        regs = [56, 54] + [sStamp + 2*k for k in range(nst[0])]
        assert len(regs) <= 16
        for k, r in enumerate(regs):
            t.e(f"v_mov_b32 v4, s{r}\nv_mov_b32 v5, s{r+1}\nglobal_store_dwordx2 v2, v[4:5], s[58:59] offset:{8*k}\ns_nop 1")
    t.e("L_end:\ns_endpgm")
    main_lin_end = len(t.tr)
    t.e(f"""
    T_sw:
    s_cmp_eq_u32 s{sCnt}, 6
    s_cbranch_scc1 T_sw2
    s_mov_b32 s{sA}, s{sWO}
    s_mov_b32 s{sA+1}, s{sWO+1}
    s_mov_b32 s{sA+2}, s{sWO+2}
    s_mov_b32 s{soA}, 0
    s_mov_b32 s{inA}, 128
    """ + "\n".join(f"v_mov_b32 v{voA[k]}, v{voW[k]}" for k in range(4)) + f"""
    s_branch B_sw
    T_sw2:
    s_mov_b32 s{sB}, s{sWO}
    s_mov_b32 s{sB+1}, s{sWO+1}
    s_mov_b32 s{sB+2}, s{sWO+2}
    s_mov_b32 s{soB}, 114688
    s_mov_b32 s{inB}, 128
    """ + "\n".join(f"v_mov_b32 v{voB[k]}, v{voW[k]}" for k in range(4)) + """
    s_branch B_sw
    """)
    seen = set()
    for name, buf in trams:
        if name in seen: continue
        seen.add(name)
        t.e(f"T_{name}:\ns_call_b64 s[{sRet}:{sRet+1}], R_{buf}\ns_branch B_{name}")
    for buf in range(2):
        t.e(f"R_{buf}:\ns_nop 15")
        t.e("\n".join(rowmax(buf, T[0], T[1])))
        t.e(f"v_max_f32 v{T[0]}, 0, v{T[0]}\nv_exp_f32 v{T[2]}, -v{T[0]}")
        for r in range(16): t.e(f"v_sub_f32 v{NM+r}, v{NM+r}, v{T[0]}")
        for r in range(16): t.e(f"v_sub_f32 v{S[1-buf]+r}, v{S[1-buf]+r}, v{T[0]}")
        for r in range(16): t.e(f"v_sub_f32 v{S[buf]+r}, v{S[buf]+r}, v{T[0]}")
        for r in range(16): t.e(sm_exp(buf, r))
        t.e(f"v_mul_f32 v{L[1-buf]}, v{L[1-buf]}, v{T[2]}")
        for r in range(16): t.e(sm_add(buf, r))
        for r2 in range(8): t.e(sm_cvt(r2))
        for r in range(128): t.e(f"v_mul_f32 v{O+r}, v{O+r}, v{T[2]}")
        t.e(f"s_nop 1\ns_setpc_b64 s[{sRet}:{sRet+1}]")
    lines, lin = t.fold()
    errs = check_hazards(lin)
    k1 = "\n".join(lines) + "\n"

    r = Trace()
    r.e(f"""
    s_cmp_ge_u32 s2, 448
    s_cbranch_scc1 L_end2
    {"s_memrealtime s[24:25]" if dbg is not None else ""}
    s_load_dwordx2 s[4:5], s[0:1], 96
    s_load_dwordx2 s[8:9], s[0:1], 80
    s_mul_i32 s12, s2, {(65536 + 27)//28}
    s_lshr_b32 s12, s12, 16
    s_mul_i32 s13, s12, 28
    s_sub_u32 s13, s2, s13
    s_mul_i32 s14, s13, {(65536 + 6)//7}
    s_lshr_b32 s14, s14, 16
    s_mul_i32 s15, s14, 7
    s_sub_u32 s15, s13, s15
    s_mul_i32 s16, s12, {16*114688}
    s_lshl_b32 s17, s13, 12
    s_add_u32 s16, s16, s17
    v_lshlrev_b32 v1, 4, v0
    s_waitcnt lgkmcnt(0)
    s_and_b32 s5, s5, 0xffff
    s_mov_b32 s6, {256*114688}
    s_mov_b32 s7, 0x20000
    """)
    for k in range(16):
        r.vmem(f"buffer_load_dwordx4 {vr(16+4*k,4)}, v1, s[4:7], s16 offen{rdfl}", f"p{k}")
        if k < 15: r.e("s_add_u32 s16, s16, 114688")
    r.e(f"""
    s_and_b32 s9, s9, 0xffff
    s_mov_b32 s10, {8*128*896*2}
    s_mov_b32 s11, 0x20000
    s_and_b32 s18, s12, 7
    s_lshr_b32 s19, s12, 3
    s_lshl_b32 s18, s18, 7
    s_lshl_b32 s20, s14, 5
    s_add_u32 s18, s18, s20
    s_mul_i32 s18, s18, 1792
    s_mul_i32 s19, s19, 896
    s_add_u32 s18, s18, s19
    s_lshl_b32 s20, s15, 7
    s_add_u32 s18, s18, s20
    v_and_b32 v2, 31, v0
    v_mul_u32_u24 v2, 1792, v2
    v_lshrrev_b32 v3, 5, v0
    v_lshl_add_u32 v2, v3, 4, v2
    """)
    for k in range(16):
        r.vmwait(f"p{k}")
        for q in range(4):
            src = 16 + 4*k + q
            if k == 0:
                r.e(f"v_lshlrev_b32 v{4+2*q}, 16, v{src}\nv_and_b32 v{5+2*q}, 0xffff0000, v{src}")
            else:
                r.e(f"v_lshlrev_b32 v12, 16, v{src}\nv_and_b32 v13, 0xffff0000, v{src}\nv_pk_add_f32 {vr(4+2*q,2)}, {vr(4+2*q,2)}, v[12:13]")
    for q in range(4): r.e(f"v_cvt_pk_bf16_f32 v{16+q}, v{4+2*q}, v{5+2*q}")
    r.e("buffer_store_dwordx4 v[16:19], v2, s[8:11], s18 offen")
    if dbg is not None:
        r.e("""
        s_cmp_lg_u32 s2, 447
        s_cbranch_scc1 L_end2
        s_waitcnt vmcnt(0)
        s_memrealtime s[26:27]
        s_load_dwordx2 s[20:21], s[0:1], 88
        s_load_dwordx2 s[22:23], s[0:1], 96
        s_waitcnt lgkmcnt(0)
        s_add_u32 s22, s22, 0x9000000
        s_addc_u32 s23, s23, 0
        v_and_b32 v4, 15, v0
        v_lshlrev_b32 v4, 2, v4
        global_load_dword v5, v4, s[22:23]
        s_load_dword s28, s[22:23], 60
        s_waitcnt vmcnt(0) lgkmcnt(0)
        global_store_dword v4, v5, s[20:21]
        s_waitcnt vmcnt(0)
        s_sub_u32 s24, s24, s28
        s_sub_u32 s26, s26, s28
        v_mov_b32 v6, s24
        v_mov_b32 v7, s26
        v_mov_b32 v4, 0
        global_store_dwordx2 v4, v[6:7], s[20:21] offset:52
        """)
    r.e("L_end2:")
    lines2, lin2 = r.fold()
    errs += check_hazards(lin2)
    k2 = "\n".join(lines2) + "\n"
    txt = file_wrap([f"; @launch kernel=attn_kernel grid=(256,1,1) block=(256,1,1) lds={8*SLOT}",
                     f"; @launch kernel=red_kernel grid=(448,1,1) block=(256,1,1) lds=0"],
                    [("attn_kernel", k1, 464, 256, 96), ("red_kernel", k2, 80, 80, 32)])
    txt = txt.replace('.section .rodata,"a"', 'L_code_end:\n.section .rodata,"a"')
    assert not errs
    return txt

if __name__ == "__main__":
    open("v1.s", "w").write(gen())
    open("v1_st.s", "w").write(gen(stamps=True))
    open("v1_dbg.s", "w").write(gen(stamps=True, dbg=17))
```
